```python
import torch

def _softmax(x, axis=-1):
    return torch.softmax(x, dim=axis)

def _gelu(x):
    return torch.nn.functional.gelu(x, approximate='tanh')

def _silu(x):
    return torch.nn.functional.silu(x)

def _sigmoid(x):
    return torch.sigmoid(x)

def _layernorm(x, axis=-1, eps=1e-05):
    m = x.mean(dim=axis, keepdim=True)
    v = x.var(dim=axis, keepdim=True, unbiased=False)
    return (x - m) / torch.sqrt(v + eps)

def _scatter_add(tgt, idx, src, axis=0):
    return tgt.clone().index_add_(axis, idx, src)

def _segment_sum(src, seg, n):
    out = torch.zeros((n,) + src.shape[1:], dtype=src.dtype)
    return out.index_add_(0, seg, src)

def _pad(x, pw):
    flat = tuple((v for pair in reversed(pw) for v in pair))
    return torch.nn.functional.pad(x, flat)
kernel_name = 'adaLN_cond__compressed_kv_cla__glu_gated_reglu__prompt'

def setup_inputs():

    _w = lambda a: (lambda t: t.to(torch.bfloat16) if t.is_floating_point() else t)(torch.as_tensor(a))

    def _A_setup():
        B, H, Sq, Sk, D, M = (1, 32, 2048, 2048, 128, 512)
        Dc = 4 * D
        return {'x': _w((lambda *s: torch.randn(*s, dtype=torch.bfloat16) * 0.05)(B, Sq, M)), 'c_kv': _w((lambda *s: torch.randn(*s, dtype=torch.bfloat16) * 0.8)(B, Sk, Dc)), 'w_q': _w((lambda *s: torch.randn(*s, dtype=torch.bfloat16) * 1.6)(M, H, D) * M ** (-0.5)), 'w_uk': _w((lambda *s: torch.randn(*s, dtype=torch.bfloat16) * 1.6)(Dc, H, D) * Dc ** (-0.5)), 'w_uv': _w((lambda *s: torch.randn(*s, dtype=torch.bfloat16) * 0.8)(Dc, H, D) * Dc ** (-0.5)), 'w_o': _w((lambda *s: torch.randn(*s, dtype=torch.bfloat16) * 0.8)(H, D, M) * (H * D) ** (-0.5))}
    _A_in = _A_setup()

    def _B_setup():
        B, S, D, F = (1, 2048, 512, 1792)
        return {'x': _w((lambda *s: torch.randn(*s, dtype=torch.bfloat16) * 0.05)(B, S, D)), 'W_gate': _w((lambda *s: torch.randn(*s, dtype=torch.bfloat16) * 0.4)(D, F) * (2.0 / D) ** 0.5), 'W_up': _w((lambda *s: torch.randn(*s, dtype=torch.bfloat16) * 0.4)(D, F) * (2.0 / D) ** 0.5), 'W_down': _w((lambda *s: torch.randn(*s, dtype=torch.bfloat16) * 0.4)(F, D) * (1.0 / F) ** 0.5)}
    _B_in = _B_setup()
    return {'A_x': _A_in['x'], 'A_c_kv': _A_in['c_kv'], 'A_w_q': _A_in['w_q'], 'A_w_uk': _A_in['w_uk'], 'A_w_uv': _A_in['w_uv'], 'A_w_o': _A_in['w_o'], 'B_x': _B_in['x'], 'B_W_gate': _B_in['W_gate'], 'B_W_up': _B_in['W_up'], 'B_W_down': _B_in['W_down'], 'c': _w((lambda *s: torch.randn(*s, dtype=torch.bfloat16) * 0.1)(1, 512) * 8.0), 'w_mod': _w((lambda *s: torch.randn(*s, dtype=torch.bfloat16) * 0.1)(512, 6 * 512) * 512 ** (-0.5) * 8.0)}

def reference(A_x, A_c_kv, A_w_q, A_w_uk, A_w_uv, A_w_o, B_x, B_W_gate, B_W_up, B_W_down, c, w_mod):

    def _A_ref(x, c_kv, w_q, w_uk, w_uv, w_o):
        B, Sq, M = (x.shape[0], x.shape[1], x.shape[2])
        Sk = c_kv.shape[1]
        H, D = (w_q.shape[1], w_q.shape[2])
        q = torch.einsum('bqm,mhd->bhqd', x, w_q)
        k = torch.einsum('bkc,chd->bhkd', c_kv, w_uk)
        v = torch.einsum('bkc,chd->bhkd', c_kv, w_uv)
        scores = torch.einsum('bhqd,bhkd->bhqk', q, k) * D ** (-0.5)
        off = Sk - Sq
        qi = torch.arange(Sq)[:, None]
        kj = torch.arange(Sk)[None, :]
        cmask = kj <= qi + off
        scores = torch.where(cmask[None, None], scores, -1000000000.0)
        p = _softmax(scores, axis=-1)
        ctx = torch.einsum('bhqk,bhkd->bhqd', p, v)
        return torch.einsum('bhqd,hdm->bqm', ctx, w_o)

    def _B_ref(x, W_gate, W_up, W_down):
        gate = torch.einsum('bsd,df->bsf', x, W_gate)
        up = torch.einsum('bsd,df->bsf', x, W_up)
        gate = gate * (lambda x, dt: x.to(dt))(gate > 0, gate.dtype)
        h = gate * up
        return torch.einsum('bsf,fd->bsd', h, W_down)
    x = A_x
    mod = (_silu(c) @ w_mod).reshape(c.shape[0], 6, 1, -1)
    sa, ca, ga, sb, cb, gb = (mod[:, 0].clone(), mod[:, 1].clone(), mod[:, 2].clone(), mod[:, 3].clone(), mod[:, 4].clone(), mod[:, 5].clone())
    h = _layernorm(x, axis=-1) * (1 + ca) + sa
    x = x + ga * _A_ref(h, A_c_kv, A_w_q, A_w_uk, A_w_uv, A_w_o)
    h = _layernorm(x, axis=-1) * (1 + cb) + sb
    x = x + gb * _B_ref(h, B_W_gate, B_W_up, B_W_down)
    return x
```

```python
from common import *
from gemm import *
from kernels import store_bf16_perm
import math, struct

def f2u(x): return struct.unpack('<I', struct.pack('<f', x))[0]
CSC = f2u(math.log2(math.e) / math.sqrt(128.0))
NEG = f2u(-1e30)

def gen_attn(a):
    name = "k_attn_kernel"
    T = 4
    vXd, vWd, vKd, vVd = 16, 17, 18, 19
    KA_, VA_, XA_, WA_ = 20, 28, 32, 36
    vM, vL, vD, vMX, vT, vAL, vMC = 40, 41, 42, 43, 44, 45, 46
    QF, S, P, O, FR = 48, 80, 112, 128, 192
    QS = 131072
    kernel_begin(a, name)
    end = a.newlabel("end")
    a("s_cmp_ge_u32 s2, 256")
    a(f"s_cbranch_scc1 {end}")
    load_ptr(a, 40, 'wq'); load_ptr(a, 46, 'ws')
    a("s_and_b32 s35, s2, 7")
    a("s_lshr_b32 s36, s2, 3")
    a("s_and_b32 s37, s36, 3")
    a("s_lshl_b32 s38, s35, 2")
    a("s_add_u32 s37, s37, s38")
    a("s_lshr_b32 s38, s36, 2")
    a("s_sub_u32 s39, 15, s38")
    a("v_and_b32 v1, 63, v0")
    a("v_lshrrev_b32 v2, 6, v0")
    a("s_nop 0")
    a("v_readfirstlane_b32 s28, v2")
    a("s_waitcnt lgkmcnt(0)")
    a("s_lshr_b32 s29, s28, 2")
    a("s_and_b32 s30, s28, 3")
    make_srd(a, 4, 46, WS_H, 2048*1024)
    make_srd(a, 8, 40, 0, 512*8192)
    a("s_lshl_b32 s50, s37, 19")
    a("s_add_u32 s52, s46, s50")
    a("s_addc_u32 s53, s47, 0")
    make_srd(a, 12, 52, WS_K, 2048*256)
    make_srd(a, 16, 52, WS_V, 2048*256)
    make_srd(a, 20, 46, WS_CTX, 2048*8192)
    lane_decomp(a, 1, T)
    xdma_voff(a, 1, "s28", vXd, 10, 1024)
    wdma_voff(a, 1, "s28", vWd, 10, 8192, 128)
    wdma_voff(a, 1, "s28", vVd, 10, 256, 128)
    a(f"v_lshrrev_b32 {v(vKd)}, 4, v1")
    a("s_lshl_b32 s50, s28, 2")
    a(f"v_add_u32 {v(vKd)}, s50, {v(vKd)}")
    a(f"v_xor_b32 v10, {v(vKd)}, v1")
    a("v_and_b32 v10, 15, v10")
    a(f"v_lshlrev_b32 {v(vKd)}, 8, {v(vKd)}")
    a(f"v_lshl_add_u32 {v(vKd)}, v10, 4, {v(vKd)}")
    a(f"v_and_b32 v10, 15, {v(T)}")
    a(f"v_xor_b32 v10, v10, {v(T+1)}")
    a("v_lshlrev_b32 v10, 4, v10")
    a(f"v_lshl_add_u32 v10, {v(T)}, 8, v10")
    a("s_lshl_b32 s50, s29, 14")
    a(f"v_add_u32 {v(KA_)}, s50, v10")
    for i in range(1, 8):
        a(f"v_xor_b32 {v(KA_+i)}, {i<<5}, {v(KA_)}")
    for db in range(4):
        wfrag_addr(a, T, VA_+db, 10, 256, True, db, 32768)
        a(f"v_add_u32 {v(VA_+db)}, s50, {v(VA_+db)}")
    a("s_lshl_b32 s50, s28, 12")
    xfrag_addrs(a, T, XA_, 128, 0, "s50")
    for nb in range(4):
        wfrag_addr(a, T, WA_+nb, 10, 256, False, nb, 32768)
    a("s_lshl_b32 s33, s28, 10")
    a("s_lshl_b32 s24, s38, 17")
    a("s_lshl_b32 s25, s39, 17")
    a("s_lshl_b32 s26, s37, 8")
    def qdma(t):
        st = (t & 1)*65536
        out = []
        for jj in range(4):
            out.append([f"s_add_u32 m0, s33, {st + jj*8192}",
                        f"s_add_u32 s34, s{24 + (jj>>1)}, {t*128 + (jj&1)*64*1024}",
                        f"buffer_load_dwordx4 {v(vXd)}, s[4:7], s34 offen lds"])
        for jj in range(2):
            out.append([f"s_add_u32 m0, s33, {st + 32768 + jj*8192}",
                        f"s_add_u32 s34, s26, {t*64*8192 + jj*32*8192}",
                        f"buffer_load_dwordx4 {v(vWd)}, s[8:11], s34 offen lds"])
        return out
    def qreads(ks, f):
        a(f"ds_read_b128 {v(f,4)}, {v(XA_+ks)}")
        for nb in range(4):
            for half in range(2):
                a(f"ds_read_b64_tr_b16 {v(f+4+4*nb+2*half,2)}, {v(WA_+nb)} offset:{16*ks*256+half*1024}")
    for g in qdma(0):
        for i in g: a(i)
    fr = [FR, FR+20]
    for t in range(8):
        a("s_waitcnt vmcnt(0)")
        a("s_barrier")
        qreads(0, fr[0])
        d = qdma(t+1) if t < 7 else []
        for ks in range(4):
            a("s_waitcnt lgkmcnt(0)")
            if ks < 3: qreads(ks+1, fr[(ks+1)&1])
            f = fr[ks&1]
            for nb in range(4):
                c = O + nb*16
                src = "0" if (t == 0 and ks == 0) else v(c,16)
                a(f"{MF} {v(c,16)}, {v(f+4+4*nb,4)}, {v(f,4)}, {src}")
                if d:
                    for i in d.pop(0): a(i)
        for i in range(4):
            a(f"v_xor_b32 {v(XA_+i)}, 0x10000, {v(XA_+i)}")
            a(f"v_xor_b32 {v(WA_+i)}, 0x10000, {v(WA_+i)}")
    a("s_nop 7")
    for i in range(32):
        a(f"v_cvt_pk_bf16_f32 {v(QF+i)}, {v(O+2*i)}, {v(O+2*i+1)}")
    a("s_barrier")
    a("v_lshlrev_b32 v11, 4, v1")
    a("s_lshl_b32 s50, s30, 13")
    a("v_add_u32 v11, s50, v11")
    a("s_lshl_b32 s50, s29, 16")
    a("s_add_u32 s50, s50, 65536")
    a("v_add_u32 v12, s50, v11")
    for i in range(8):
        a(f"ds_write_b128 v12, {v(QF+4*i,4)} offset:{i*1024}")
    def kvdma():
        out = []
        for jj in range(4):
            out.append([f"s_add_u32 m0, s31, {jj*8192}",
                        f"s_add_u32 s34, s27, {jj*32*256}",
                        f"buffer_load_dwordx4 {v(vKd)}, s[12:15], s34 offen lds"])
        for jj in range(4):
            out.append([f"s_add_u32 m0, s31, {32768 + jj*8192}",
                        f"s_add_u32 s34, s27, {jj*32*256}",
                        f"buffer_load_dwordx4 {v(vVd)}, s[16:19], s34 offen lds"])
        return out
    a("s_mov_b32 s27, 0")
    a("s_mov_b32 s31, s33")
    for g in kvdma():
        for i in g: a(i)
    a("s_waitcnt lgkmcnt(0)")
    a("s_barrier")
    a("v_add_u32 v12, 0x10000, v11")
    for i in range(8):
        a(f"ds_read_b128 {v(QF+4*i,4)}, v12 offset:{i*1024}")
    a("s_mov_b32 s54, 0")
    a("s_mov_b32 s55, 0")
    a("s_add_u32 s56, s38, 1")
    a(f"s_mov_b32 s57, {hex(CSC)}")
    a(f"s_mov_b32 s58, {hex(NEG)}")
    a("s_lshl_b32 s50, s30, 5")
    a("s_lshl_b32 s51, s29, 6")
    a("s_sub_u32 s50, s50, s51")
    a(f"v_lshlrev_b32 v10, 2, {v(T+1)}")
    a(f"v_sub_u32 {v(vD)}, {v(T)}, v10")
    a(f"v_add_u32 {v(vD)}, s50, {v(vD)}")
    blk_start = a.newlabel("blk")
    a.label(blk_start)
    a(f"v_mov_b32 {v(vM)}, s58")
    a(f"v_mov_b32 {v(vL)}, 0")
    for i in range(64):
        a(f"v_mov_b32 {v(O+i)}, 0")
    loop = a.newlabel("loop")
    a.label(loop)
    a("s_waitcnt vmcnt(0) lgkmcnt(0)")
    a("s_barrier")
    nodma = a.newlabel("nodma")
    a("s_xor_b32 s31, s31, 0x10000")
    a("s_add_u32 s59, s55, 1")
    a("s_cmp_lt_u32 s59, s56")
    a("s_cselect_b32 s60, 0, 1")
    a("s_cselect_b32 s59, s59, 0")
    a("s_lshl_b32 s27, s59, 15")
    a("s_and_b32 s61, s60, s54")
    a("s_cmp_eq_u32 s61, 1")
    a(f"s_cbranch_scc1 {nodma}")
    for g in kvdma():
        for i in g: a(i)
    a.label(nodma)
    skip = a.newlabel("skip")
    a("s_cmp_lt_u32 s30, 2")
    a("s_cselect_b32 s61, s29, 0")
    a("s_and_b32 s61, s61, s60")
    a("s_cmp_eq_u32 s61, 1")
    a(f"s_cbranch_scc1 {skip}")
    order = [(kb, ks) for kb in range(2) for ks in range(8)]
    def kread(i):
        kb, ks = order[i]
        a(f"ds_read_b128 {v(FR+4*(i%12),4)}, {v(KA_+ks)} offset:{kb*8192}")
    for i in range(8): kread(i)
    for i in range(16):
        kb, ks = order[i]
        if i % 4 == 0:
            rem = min(16, i+8+ (0)) - (i+4)
            issued = min(16, 8 + i)
            a(f"s_waitcnt lgkmcnt({issued-(i+4)})")
        c = S + kb*16
        src = "0" if ks == 0 else v(c,16)
        a(f"{MF} {v(c,16)}, {v(FR+4*(i%12),4)}, {v(QF+4*ks,4)}, {src}")
        if i + 8 < 16: kread(i+8) if (i+8) % 12 not in [(j % 12) for j in range(i+1, i+8)] else None
    vorder = [(ks, db) for ks in range(4) for db in range(4)]
    def vread(i):
        ks, db = vorder[i]
        for half in range(2):
            a(f"ds_read_b64_tr_b16 {v(FR+4*(i%12)+2*half,2)}, {v(VA_+db)} offset:{ks*4096+half*2048}")
    a("s_nop 7")
    for i in range(4): vread(i)
    a("s_nop 3")
    nomask = a.newlabel("nomask")
    a("s_cmp_eq_u32 s60, 0")
    a(f"s_cbranch_scc1 {nomask}")
    a(f"v_mov_b32 {v(vT)}, s58")
    seq = [(kb*16+r, 32*kb + (r&3) + 8*(r>>2)) for kb in range(2) for r in range(16)]
    for i in range(32 + 3):
        if i < 32:
            a(f"v_cmp_ge_i32 {s(62+2*(i%4),2)}, {v(vD)}, {seq[i][1]}")
        else:
            a("s_nop 0")
        if i >= 3:
            j = i - 3
            a(f"v_cndmask_b32 {v(S+seq[j][0])}, {v(vT)}, {v(S+seq[j][0])}, {s(62+2*(j%4),2)}")
    a.label(nomask)
    a(f"v_max3_f32 {v(vMX)}, {v(S)}, {v(S+1)}, {v(S+2)}")
    for i in range(3, 31, 2):
        a(f"v_max3_f32 {v(vMX)}, {v(vMX)}, {v(S+i)}, {v(S+i+1)}")
    a(f"v_max3_f32 {v(vMX)}, {v(vMX)}, {v(S+31)}, {v(vM)}")
    a(f"v_mov_b32 {v(vT)}, {v(vMX)}")
    a("s_nop 1")
    a(f"v_permlane32_swap_b32 {v(vMX)}, {v(vT)}")
    a("s_nop 1")
    a(f"v_max_f32 {v(vMX)}, {v(vMX)}, {v(vT)}")
    a(f"v_sub_f32 {v(vAL)}, {v(vM)}, {v(vMX)}")
    a(f"v_mul_f32 {v(vAL)}, s57, {v(vAL)}")
    a(f"v_exp_f32 {v(vAL)}, {v(vAL)}")
    a(f"v_mul_f32 {v(vMC)}, s57, {v(vMX)}")
    a(f"v_mov_b32 {v(vM)}, {v(vMX)}")
    for i in range(32):
        a(f"v_fma_f32 {v(S+i)}, {v(S+i)}, s57, -{v(vMC)}")
    a(f"v_mul_f32 {v(vL)}, {v(vL)}, {v(vAL)}")
    for i in range(32):
        a(f"v_exp_f32 {v(S+i)}, {v(S+i)}")
        if i < 32:
            a(f"v_mul_f32 {v(O+2*i)}, {v(O+2*i)}, {v(vAL)}")
            a(f"v_mul_f32 {v(O+2*i+1)}, {v(O+2*i+1)}, {v(vAL)}")
    for i in range(16):
        a(f"v_cvt_pk_bf16_f32 {v(P+i)}, {v(S+2*i)}, {v(S+2*i+1)}")
        a(f"v_add_f32 {v(vL)}, {v(vL)}, {v(S+2*i)}")
        a(f"v_add_f32 {v(vL)}, {v(vL)}, {v(S+2*i+1)}")
    for i in range(4, 7): vread(i)
    issued = 7
    for i in range(16):
        ks, db = vorder[i]
        a(f"s_waitcnt lgkmcnt({2*(issued-(i+1))})")
        c = O + db*16
        a(f"{MF} {v(c,16)}, {v(FR+4*(i%12),4)}, {v(P+4*ks,4)}, {v(c,16)}")
        if issued < 16:
            vread(issued); issued += 1
    a.label(skip)
    for i in range(8): a(f"v_xor_b32 {v(KA_+i)}, 0x10000, {v(KA_+i)}")
    for i in range(4): a(f"v_xor_b32 {v(VA_+i)}, 0x10000, {v(VA_+i)}")
    a("s_add_u32 s55, s55, 1")
    a("s_cmp_eq_u32 s60, 0")
    a(f"s_cbranch_scc1 {loop}")
    a("s_nop 7")
    a(f"v_mov_b32 {v(vT)}, {v(vL)}")
    a("s_nop 1")
    a(f"v_permlane32_swap_b32 {v(vL)}, {v(vT)}")
    a("s_nop 1")
    a(f"v_add_f32 {v(vL)}, {v(vL)}, {v(vT)}")
    a("s_barrier")
    a(f"v_add_u32 v12, {hex(QS)}, v11")
    for i in range(8):
        a(f"ds_read_b128 {v(QF+4*i,4)}, v12 offset:{i*1024}")
    a("s_xor_b32 s50, s31, 0x10000")
    a("s_and_b32 s50, s50, 0x10000")
    a("s_lshl_b32 s51, s28, 13")
    a("s_add_u32 s51, s51, s50")
    a("s_xor_b32 s50, s51, 0x8000")
    a("v_lshlrev_b32 v13, 4, v1")
    a("v_add_u32 v14, s51, v13")
    a("v_add_u32 v15, s50, v13")
    g1 = a.newlabel("g1"); gj = a.newlabel("gj")
    a("s_cmp_eq_u32 s29, 1")
    a(f"s_cbranch_scc1 {g1}")
    for i in range(8):
        a(f"ds_write_b128 v14, {v(O+32+4*i,4)} offset:{i*1024}")
    a(f"s_branch {gj}")
    a.label(g1)
    for i in range(8):
        a(f"ds_write_b128 v14, {v(O+4*i,4)} offset:{i*1024}")
    a("s_waitcnt lgkmcnt(0)")
    for i in range(32):
        a(f"v_mov_b32 {v(O+i)}, {v(O+32+i)}")
    a.label(gj)
    a("s_waitcnt lgkmcnt(0)")
    a("s_barrier")
    a("v_lshlrev_b32 v13, 3, v1")
    a("s_lshl_b32 s51, s28, 9")
    a(f"s_add_u32 s51, s51, {QS}")
    a("s_xor_b32 s50, s51, 0x800")
    a("v_add_u32 v14, s51, v13")
    a("v_add_u32 v13, s50, v13")
    a(f"ds_write_b64 v14, {v(vM,2)}")
    for i in range(8):
        a(f"ds_read_b128 {v(O+32+4*i,4)}, v15 offset:{i*1024}")
    a("s_waitcnt lgkmcnt(0)")
    a("s_barrier")
    a(f"ds_read_b64 {v(S,2)}, v13")
    a("s_waitcnt lgkmcnt(0)")
    a(f"v_max_f32 {v(vMX)}, {v(vM)}, {v(S)}")
    a(f"v_sub_f32 {v(vAL)}, {v(vM)}, {v(vMX)}")
    a(f"v_sub_f32 {v(vT)}, {v(S)}, {v(vMX)}")
    a(f"v_mul_f32 {v(vAL)}, s57, {v(vAL)}")
    a(f"v_mul_f32 {v(vT)}, s57, {v(vT)}")
    a(f"v_exp_f32 {v(vAL)}, {v(vAL)}")
    a(f"v_exp_f32 {v(vT)}, {v(vT)}")
    a("s_nop 0")
    a(f"v_mul_f32 {v(vL)}, {v(vL)}, {v(vAL)}")
    a(f"v_fmac_f32 {v(vL)}, {v(S+1)}, {v(vT)}")
    a(f"v_rcp_f32 {v(vL)}, {v(vL)}")
    a("s_nop 0")
    a(f"v_mul_f32 {v(vAL)}, {v(vAL)}, {v(vL)}")
    a(f"v_mul_f32 {v(vT)}, {v(vT)}, {v(vL)}")
    for i in range(32):
        a(f"v_mul_f32 {v(O+i)}, {v(O+i)}, {v(vAL)}")
        a(f"v_fmac_f32 {v(O+i)}, {v(O+32+i)}, {v(vT)}")
    a("s_cmp_eq_u32 s54, 0")
    a("s_cselect_b32 s50, s38, s39")
    a("s_lshl_b32 s50, s50, 20")
    a("s_lshl_b32 s51, s30, 18")
    a("s_add_u32 s50, s50, s51")
    a("s_add_u32 s50, s50, s26")
    a("s_lshl_b32 s51, s29, 7")
    a("s_add_u32 s50, s50, s51")
    a(f"v_lshlrev_b32 v13, 13, {v(T)}")
    a(f"v_lshl_add_u32 v13, {v(T+1)}, 4, v13")
    for db in range(2):
        store_bf16_perm(a, O+16*db, S+8*db, 13, 20, "s50", db*64)
    a("s_cmp_eq_u32 s54, 1")
    a(f"s_cbranch_scc1 {end}")
    a("s_mov_b32 s54, 1")
    a("s_mov_b32 s55, 0")
    a("s_add_u32 s56, s39, 1")
    a(f"s_branch {blk_start}")
    a.label(end)
    a("s_endpgm")
    return name, 240, (256, 512, 163840)
```

```python
class Asm:
    def __init__(self):
        self.lines = []
        self.uid = 0
    def __call__(self, s):
        self.lines.append("    " + s)
    def label(self, s):
        self.lines.append(s + ":")
    def raw(self, s):
        self.lines.append(s)
    def newlabel(self, p="L"):
        self.uid += 1
        return f".{p}_{self.uid}"
    def text(self):
        return "\n".join(self.lines) + "\n"

KA = dict(x=0, ckv=8, wq=16, wuk=24, wuv=32, wo=40, bx=48, wg=56, wu=64, wd=72, c=80, wmod=88, out=96, dbg=104, ws=112)
WS_MOD = 0
WS_H = 0x10000
WS_K = 0x400000
WS_V = 0x1400000
WS_CTX = 0x2400000
WS_PART = 0x3400000
WS_X1 = 0x4400000
WS_H2 = 0x4800000
WS_ACT = 0x4C00000

def v(i, n=1):
    return f"v{i}" if n == 1 else f"v[{i}:{i+n-1}]"
def s(i, n=1):
    return f"s{i}" if n == 1 else f"s[{i}:{i+n-1}]"

def kernel_begin(a, name):
    a.raw(f".globl {name}")
    a.raw(".p2align 8")
    a.raw(f".type {name},@function")
    a.label(name)

def kernel_desc(name, nvgpr, nsgpr=96):
    acc = (nvgpr + 3) // 4 * 4
    return f""".p2align 6
.amdhsa_kernel {name}
  .amdhsa_next_free_vgpr {nvgpr}
  .amdhsa_next_free_sgpr {nsgpr}
  .amdhsa_accum_offset {acc}
  .amdhsa_group_segment_fixed_size 0
  .amdhsa_kernarg_size 120
  .amdhsa_user_sgpr_count 2
  .amdhsa_user_sgpr_kernarg_segment_ptr 1
  .amdhsa_system_sgpr_workgroup_id_x 1
.end_amdhsa_kernel
"""

def load_ptr(a, sreg, key):
    a(f"s_load_dwordx2 {s(sreg,2)}, s[0:1], {KA[key]}")

def make_srd(a, d, ptr, off, nbytes):
    if off:
        a(f"s_add_u32 {s(d)}, {s(ptr)}, {hex(off)}")
        a(f"s_addc_u32 {s(d+1)}, {s(ptr+1)}, 0")
        a(f"s_and_b32 {s(d+1)}, {s(d+1)}, 0xffff")
    else:
        a(f"s_mov_b32 {s(d)}, {s(ptr)}")
        a(f"s_and_b32 {s(d+1)}, {s(ptr+1)}, 0xffff")
    a(f"s_mov_b32 {s(d+2)}, {hex(nbytes)}")
    a(f"s_mov_b32 {s(d+3)}, 0x20000")

def wave_sum(a, x, t):
    a("s_nop 1")
    a(f"v_add_f32_dpp {v(x)}, {v(x)}, {v(x)} quad_perm:[1,0,3,2] row_mask:0xf bank_mask:0xf")
    a("s_nop 1")
    a(f"v_add_f32_dpp {v(x)}, {v(x)}, {v(x)} quad_perm:[2,3,0,1] row_mask:0xf bank_mask:0xf")
    a("s_nop 1")
    a(f"v_add_f32_dpp {v(x)}, {v(x)}, {v(x)} row_half_mirror row_mask:0xf bank_mask:0xf")
    a("s_nop 1")
    a(f"v_add_f32_dpp {v(x)}, {v(x)}, {v(x)} row_mirror row_mask:0xf bank_mask:0xf")
    a(f"v_mov_b32 {v(t)}, {v(x)}")
    a("s_nop 1")
    a(f"v_permlane16_swap_b32 {v(x)}, {v(t)}")
    a("s_nop 1")
    a(f"v_add_f32 {v(x)}, {v(x)}, {v(t)}")
    a(f"v_mov_b32 {v(t)}, {v(x)}")
    a("s_nop 1")
    a(f"v_permlane32_swap_b32 {v(x)}, {v(t)}")
    a("s_nop 1")
    a(f"v_add_f32 {v(x)}, {v(x)}, {v(t)}")

def round_bf16(a, d, x):
    a(f"v_cvt_pk_bf16_f32 {v(d)}, {v(x)}, {v(x)}")
    a(f"v_lshlrev_b32 {v(d)}, 16, {v(d)}")

def ln_row(a, X, t0, sMOD, voff8, shift_col, scale_col, outregs):
    G = t0 + 4
    S = t0 + 12
    a(f"s_mov_b32 s90, {scale_col*4}")
    a(f"s_mov_b32 s91, {shift_col*4}")
    a(f"buffer_load_dwordx4 {v(G,4)}, {v(voff8)}, {s(sMOD,4)}, s90 offen")
    a(f"buffer_load_dwordx4 {v(G+4,4)}, {v(voff8)}, {s(sMOD,4)}, s90 offen offset:16")
    a(f"buffer_load_dwordx4 {v(S,4)}, {v(voff8)}, {s(sMOD,4)}, s91 offen")
    a(f"buffer_load_dwordx4 {v(S+4,4)}, {v(voff8)}, {s(sMOD,4)}, s91 offen offset:16")
    sm, tt, va = t0, t0 + 1, t0 + 2
    a(f"v_add_f32 {v(sm)}, {v(X)}, {v(X+1)}")
    for i in range(2, 8):
        a(f"v_add_f32 {v(sm)}, {v(sm)}, {v(X+i)}")
    wave_sum(a, sm, tt)
    a(f"v_mul_f32 {v(sm)}, 0x3b000000, {v(sm)}")
    for i in range(8):
        a(f"v_sub_f32 {v(X+i)}, {v(X+i)}, {v(sm)}")
    a(f"v_mul_f32 {v(va)}, {v(X)}, {v(X)}")
    for i in range(1, 8):
        a(f"v_fmac_f32 {v(va)}, {v(X+i)}, {v(X+i)}")
    wave_sum(a, va, tt)
    a(f"v_mov_b32 {v(tt)}, 0x3727c5ac")
    a(f"v_fmac_f32 {v(tt)}, 0x3b000000, {v(va)}")
    a(f"v_rsq_f32 {v(tt)}, {v(tt)}")
    a("s_waitcnt vmcnt(0)")
    for i in range(8):
        a(f"v_mul_f32 {v(X+i)}, {v(X+i)}, {v(tt)}")
    for i in range(8):
        a(f"v_fma_f32 {v(X+i)}, {v(X+i)}, {v(G+i)}, {v(S+i)}")
    for i in range(4):
        a(f"v_cvt_pk_bf16_f32 {v(outregs+i)}, {v(X+2*i)}, {v(X+2*i+1)}")

def unpack8(a, src, dst):
    for i in range(4):
        a(f"v_lshlrev_b32 {v(dst+2*i)}, 16, {v(src+i)}")
        a(f"v_and_b32 {v(dst+2*i+1)}, 0xffff0000, {v(src+i)}")
```

```python
from common import *

class LdsAddr:
    def __init__(self, a, regs, nseg, alloc):
        self.base = regs
        self.seg = {0: regs}
        for sg in range(1, nseg):
            rr = []
            for r in regs:
                n = alloc()
                a(f"v_add_u32 {v(n)}, {hex(sg*65536)}, {v(r)}")
                rr.append(n)
            self.seg[sg] = rr
    def get(self, idx, off):
        sg = off // 65536
        return self.seg[sg][idx], off % 65536

def lane_decomp(a, L, tmp):
    a(f"v_and_b32 {v(tmp)}, 31, {v(L)}")
    a(f"v_lshrrev_b32 {v(tmp+1)}, 5, {v(L)}")
    a(f"v_bfe_u32 {v(tmp+2)}, {v(L)}, 2, 2")
    a(f"v_and_b32 {v(tmp+3)}, 3, {v(L)}")
    a(f"v_bfe_u32 {v(tmp+4)}, {v(L)}, 4, 1")

def xfrag_addrs(a, T, dst, rowbytes, nchunkbits_shift, sbase=None):
    r, h = T, T+1
    a(f"v_bfe_u32 {v(dst)}, {v(r)}, 1, 3")
    a(f"v_xor_b32 {v(dst)}, {v(dst)}, {v(h)}")
    a(f"v_lshlrev_b32 {v(dst)}, 4, {v(dst)}")
    a(f"v_lshl_add_u32 {v(dst)}, {v(r)}, 7, {v(dst)}")
    if sbase is not None:
        a(f"v_add_u32 {v(dst)}, {sbase}, {v(dst)}")
    for sidx in range(1, 4):
        a(f"v_xor_b32 {v(dst+sidx)}, {sidx<<5}, {v(dst)}")

def wfrag_addr(a, T, dst, tmp, RB, perm, nb_sgpr_or_int, const_off):
    h, r4, c, cb = T+1, T+2, T+3, T+4
    a(f"v_lshl_add_u32 {v(dst)}, {v(h)}, {2 if perm else 3}, {v(r4)}")
    a(f"v_mul_u32_u24 {v(dst)}, {RB}, {v(dst)}")
    if RB >= 256:
        a(f"v_xor_b32 {v(tmp)}, {nb_sgpr_or_int}, {v(r4)}")
    else:
        a(f"v_lshrrev_b32 {v(tmp)}, 1, {v(r4)}")
        a(f"v_xor_b32 {v(tmp)}, {nb_sgpr_or_int}, {v(tmp)}")
    a(f"v_lshl_add_u32 {v(dst)}, {v(tmp)}, 6, {v(dst)}")
    a(f"v_lshl_add_u32 {v(dst)}, {v(cb)}, 5, {v(dst)}")
    a(f"v_lshl_add_u32 {v(dst)}, {v(c)}, 3, {v(dst)}")
    if const_off:
        a(f"v_add_u32 {v(dst)}, {hex(const_off)}, {v(dst)}")

def xdma_voff(a, L, sW, dst, tmp, lda):
    a(f"v_lshrrev_b32 {v(dst)}, 3, {v(L)}")
    a(f"s_lshl_b32 s90, {sW}, 3")
    a(f"v_add_u32 {v(dst)}, s90, {v(dst)}")
    a(f"v_bfe_u32 {v(tmp)}, {v(dst)}, 1, 3")
    a(f"s_mov_b32 s90, {lda}")
    a(f"v_mul_lo_u32 {v(dst)}, {v(dst)}, s90")
    a(f"v_and_b32 {v(tmp+1)}, 7, {v(L)}")
    a(f"v_xor_b32 {v(tmp)}, {v(tmp)}, {v(tmp+1)}")
    a(f"v_lshl_add_u32 {v(dst)}, {v(tmp)}, 4, {v(dst)}")

def wdma_voff(a, L, sW, dst, tmp, ldb, BNs):
    LPR = BNs // 8
    RPI = 64 // LPR
    lg = LPR.bit_length() - 1
    a(f"v_lshrrev_b32 {v(dst)}, {lg}, {v(L)}")
    a(f"s_mul_i32 s90, {sW}, {RPI}")
    a(f"v_add_u32 {v(dst)}, s90, {v(dst)}")
    if BNs >= 128:
        a(f"v_and_b32 {v(tmp)}, 3, {v(dst)}")
    else:
        a(f"v_bfe_u32 {v(tmp)}, {v(dst)}, 1, 1")
    a(f"v_lshlrev_b32 {v(tmp)}, 2, {v(tmp)}")
    a(f"s_mov_b32 s90, {ldb}")
    a(f"v_mul_lo_u32 {v(dst)}, {v(dst)}, s90")
    a(f"v_and_b32 {v(tmp+1)}, {LPR-1}, {v(L)}")
    a(f"v_xor_b32 {v(tmp)}, {v(tmp)}, {v(tmp+1)}")
    a(f"v_lshl_add_u32 {v(dst)}, {v(tmp)}, 4, {v(dst)}")
    return RPI

MF = "v_mfma_f32_32x32x16_bf16"

def gemm_A(a, name, P):
    NW, WM, WN, TM, TN, NST, KT = (P[k] for k in ('NW','WM','WN','TM','TN','NST','KT'))
    lda, ldb, nsub, perm = P['lda'], P['ldb'], P['nsub'], P['perm']
    BM = WM*TM*32
    BN = WN*TN*32
    BNs = BN // nsub
    TNs = TN // nsub
    RB = BNs*2
    XB = BM*128
    WB = BNs*128
    STG = XB + nsub*WB
    kernel_begin(a, name)
    end = a.newlabel("end")
    a(f"s_cmp_ge_u32 s2, {P['nwg']}")
    a(f"s_cbranch_scc1 {end}")
    P['setup'](a)
    a("v_and_b32 v1, 63, v0")
    a("v_lshrrev_b32 v2, 6, v0")
    a("s_nop 0")
    a("v_readfirstlane_b32 s28, v2")
    a("s_nop 3")
    a(f"s_and_b32 s29, s28, {WN-1}")
    a(f"s_lshr_b32 s30, s28, {WN.bit_length()-1}")
    nreg = [16]
    def alloc(n=1, al=1):
        nreg[0] = (nreg[0] + al - 1)//al*al
        r = nreg[0]; nreg[0] += n
        return r
    T = 4
    lane_decomp(a, 1, T)
    vXd = alloc(); vWd = alloc()
    xdma_voff(a, 1, "s28", vXd, 10, lda)
    RPI = wdma_voff(a, 1, "s28", vWd, 10, ldb, BNs)
    xa = alloc(4)
    a(f"s_mul_i32 s31, s30, {TM*32*128}")
    xfrag_addrs(a, T, xa, 128, 0, "s31")
    wa = []
    for sub in range(nsub):
        for t in range(TNs):
            r = alloc()
            a(f"s_mul_i32 s31, s29, {TNs}")
            a(f"s_add_u32 s31, s31, {t}")
            a(f"s_and_b32 s32, s31, 3")
            a(f"s_lshr_b32 s31, s31, 2")
            a(f"s_lshl_b32 s31, s31, 8")
            wfrag_addr(a, T, r, 10, RB, perm, "s32", XB + sub*WB)
            a(f"v_add_u32 {v(r)}, s31, {v(r)}")
            wa.append(r)
    nseg = (NST*STG + 65535)//65536
    XA = LdsAddr(a, [xa+i for i in range(4)], nseg, alloc)
    WA = LdsAddr(a, wa, nseg, alloc)
    fr = [alloc((TM+TN)*4, 4) for _ in range(2)]
    acc = alloc(TM*TN*16, 4)
    a(f"s_lshl_b32 s33, s28, 10")
    nX = BM//8//NW
    nWl = BNs//8//NW
    L = nX + nsub*nWl
    def dma(t):
        st = t % NST
        out = []
        for jj in range(nX):
            out.append([f"s_add_u32 m0, s33, {st*STG + jj*NW*1024}",
                        f"s_add_u32 s34, s24, {t*128 + jj*8*NW*lda}",
                        f"buffer_load_dwordx4 {v(vXd)}, s[4:7], s34 offen lds"])
        for sub in range(nsub):
            for jj in range(nWl):
                out.append([f"s_add_u32 m0, s33, {st*STG + XB + sub*WB + jj*NW*1024}",
                            f"s_add_u32 s34, s{25+sub}, {t*64*ldb + jj*NW*RPI*ldb}",
                            f"buffer_load_dwordx4 {v(vWd)}, {s(8+4*sub,4)}, s34 offen lds"])
        return out
    def reads(t, ks, f):
        st = t % NST
        for mb in range(TM):
            r, o = XA.get(ks, st*STG + mb*4096)
            a(f"ds_read_b128 {v(f+4*mb,4)}, {v(r)} offset:{o}")
        for nb in range(TN):
            for half in range(2):
                off = st*STG + 16*ks*RB + half*(8 if perm else 4)*RB
                r, o = WA.get(nb, off)
                a(f"ds_read_b64_tr_b16 {v(f+4*TM+4*nb+2*half,2)}, {v(r)} offset:{o}")
    if 'pre' in P: P['pre'](a, dict(alloc=alloc))
    for t in range(min(NST-1, KT)):
        for g in dma(t):
            for i in g: a(i)
    if 'mid' in P: P['mid'](a, dict(alloc=alloc, L=L))
    for t in range(KT):
        a(f"s_waitcnt vmcnt({L*min(NST-2, KT-1-t)})")
        a("s_barrier")
        reads(t, 0, fr[0])
        d = dma(t+NST-1) if t+NST-1 < KT else []
        for ks in range(4):
            a("s_waitcnt lgkmcnt(0)")
            if ks < 3:
                reads(t, ks+1, fr[(ks+1)&1])
            f = fr[ks&1]
            k = 0
            for nb in range(TN):
                for mb in range(TM):
                    c = acc + (nb*TM+mb)*16
                    src = "0" if (t == 0 and ks == 0) else v(c,16)
                    a(f"{MF} {v(c,16)}, {v(f+4*TM+4*nb,4)}, {v(f+4*mb,4)}, {src}")
                    if d and ks < 3:
                        for i in d.pop(0): a(i)
        for g in d:
            for i in g: a(i)
    a("s_nop 15")
    P['epilogue'](a, dict(acc=acc, TM=TM, TN=TN, T=T, alloc=alloc, TNs=TNs, fr=fr))
    a.label(end)
    a("s_endpgm")
    return name, nreg[0], (P['nwg'], NW*64, NST*STG)
```

```python
from common import *
from gemm import *

def store_bf16_perm(a, c, tmp, voff, srd, soff, imm):
    for g in range(2):
        t = tmp + 4*g
        for i in range(4):
            a(f"v_cvt_pk_bf16_f32 {v(t+i)}, {v(c+8*g+2*i)}, {v(c+8*g+2*i+1)}")
        a(f"buffer_store_dwordx4 {v(t,4)}, {v(voff)}, {s(srd,4)}, {soff} offen offset:{imm+32*g}")

def gen_kv(a):
    def setup(a):
        load_ptr(a, 40, 'ckv'); load_ptr(a, 42, 'wuk'); load_ptr(a, 44, 'wuv'); load_ptr(a, 46, 'ws'); load_ptr(a, 48, 'x')
        a("s_and_b32 s35, s2, 7")
        a("s_lshr_b32 s36, s2, 3")
        a("s_and_b32 s37, s36, 1")
        a("s_lshl_b32 s38, s35, 1")
        a("s_add_u32 s37, s37, s38")
        a("s_bfe_u32 s38, s36, 0x10001")
        a("s_lshr_b32 s39, s36, 2")
        a("s_waitcnt lgkmcnt(0)")
        make_srd(a, 4, 40, 0, 2048*1024)
        a("s_cmp_eq_u32 s38, 1")
        a("s_cselect_b32 s50, s44, s42")
        a("s_cselect_b32 s51, s45, s43")
        make_srd(a, 8, 50, 0, 512*8192)
        a("s_lshl_b32 s24, s39, 18")
        a("s_lshl_b32 s25, s37, 9")
        a(f"s_mul_i32 s52, s38, {WS_V-WS_K}")
        a("s_add_u32 s52, s46, s52")
        a("s_addc_u32 s53, s47, 0")
        make_srd(a, 16, 52, WS_K, 32*2048*256)
        make_srd(a, 56, 48, 0, 2048*1024)
        make_srd(a, 60, 46, WS_MOD, 12288)
        make_srd(a, 64, 46, WS_H, 2048*1024)
    def mid(a, c):
        t = c['alloc'](40, 4)
        a("s_lshl_b32 s34, s2, 3")
        a("s_add_u32 s34, s34, s28")
        a("s_lshl_b32 s34, s34, 10")
        a(f"v_lshlrev_b32 {v(t)}, 4, v1")
        a(f"v_lshlrev_b32 {v(t+1)}, 5, v1")
        a(f"buffer_load_dwordx4 {v(t+4,4)}, {v(t)}, s[56:59], s34 offen")
        a("s_waitcnt vmcnt(0)")
        unpack8(a, t+4, t+8)
        ln_row(a, t+8, t+16, 60, t+1, 0, 512, t+4)
        a(f"buffer_store_dwordx4 {v(t+4,4)}, {v(t)}, s[64:67], s34 offen")
        a("s_waitcnt vmcnt(0)")
    def epi(a, c):
        acc, TM, TN, T = c['acc'], c['TM'], c['TN'], c['T']
        vo = c['alloc'](); tmp = c['fr'][0]
        a(f"v_lshlrev_b32 {v(vo)}, 8, {v(T)}")
        a(f"v_lshl_add_u32 {v(vo)}, {v(T+1)}, 4, {v(vo)}")
        a("s_lshl_b32 s34, s39, 16")
        a("s_lshl_b32 s54, s30, 15")
        a("s_add_u32 s34, s34, s54")
        a("s_lshl_b32 s54, s37, 1")
        a("s_lshr_b32 s55, s29, 1")
        a("s_add_u32 s54, s54, s55")
        a("s_lshl_b32 s54, s54, 19")
        a("s_add_u32 s34, s34, s54")
        a("s_and_b32 s54, s29, 1")
        a("s_lshl_b32 s54, s54, 7")
        a("s_add_u32 s34, s34, s54")
        k = 0
        for mb in range(TM):
            a(f"s_add_u32 s54, s34, {mb*32*256}")
            for nb in range(TN):
                store_bf16_perm(a, acc+(nb*TM+mb)*16, tmp + 8*(k % 3), vo, 16, "s54", nb*64)
                k += 1
    P = dict(NW=8, WM=2, WN=4, TM=4, TN=2, NST=2, KT=8, lda=1024, ldb=8192, nsub=1, perm=False, nwg=256,
             setup=setup, epilogue=epi, mid=mid)
    return gemm_A(a, "k_kv_kernel", P)

def gen_oproj(a):
    def setup(a):
        load_ptr(a, 40, 'wo'); load_ptr(a, 46, 'ws')
        a("s_and_b32 s35, s2, 7")
        a("s_lshr_b32 s36, s2, 3")
        a("s_lshr_b32 s37, s35, 1")
        a("s_and_b32 s38, s35, 1")
        a("s_lshl_b32 s38, s38, 3")
        a("s_lshr_b32 s39, s36, 2")
        a("s_add_u32 s39, s39, s38")
        a("s_and_b32 s38, s36, 3")
        a("s_waitcnt lgkmcnt(0)")
        make_srd(a, 4, 46, WS_CTX, 2048*8192)
        make_srd(a, 8, 40, 0, 4096*1024)
        make_srd(a, 16, 46, WS_PART, 4*2048*2048)
        a("s_lshl_b32 s24, s39, 20")
        a("s_lshl_b32 s54, s37, 11")
        a("s_add_u32 s24, s24, s54")
        a("s_lshl_b32 s25, s37, 20")
        a("s_lshl_b32 s54, s38, 8")
        a("s_add_u32 s25, s25, s54")
    def epi(a, c):
        acc, TM, TN, T = c['acc'], c['TM'], c['TN'], c['T']
        vo = c['alloc']()
        a(f"v_lshlrev_b32 {v(vo)}, 11, {v(T)}")
        a(f"v_lshl_add_u32 {v(vo)}, {v(T+1)}, 4, {v(vo)}")
        a("s_lshl_b32 s34, s37, 22")
        a("s_lshl_b32 s54, s39, 18")
        a("s_add_u32 s34, s34, s54")
        a(f"s_mul_i32 s54, s30, {TM*32*2048}")
        a("s_add_u32 s34, s34, s54")
        a("s_lshl_b32 s54, s38, 9")
        a("s_add_u32 s34, s34, s54")
        a(f"s_mul_i32 s54, s29, {TN*32*4}")
        a("s_add_u32 s34, s34, s54")
        for mb in range(TM):
            a(f"s_add_u32 s54, s34, {mb*32*2048}")
            for nb in range(TN):
                for q in range(4):
                    a(f"buffer_store_dwordx4 {v(acc+(nb*TM+mb)*16+4*q,4)}, {v(vo)}, s[16:19], s54 offen offset:{nb*128+q*32}")
    P = dict(NW=4, WM=2, WN=2, TM=2, TN=2, NST=4, KT=16, lda=8192, ldb=1024, nsub=1, perm=False, nwg=256,
             setup=setup, epilogue=epi)
    return gemm_A(a, "k_oproj_kernel", P)

def gen_gu(a):
    def setup(a):
        load_ptr(a, 40, 'wg'); load_ptr(a, 42, 'wu'); load_ptr(a, 46, 'ws')
        a("s_and_b32 s35, s2, 7")
        a("s_lshr_b32 s36, s2, 3")
        a("s_mul_i32 s37, s36, 37")
        a("s_lshr_b32 s37, s37, 8")
        a("s_mul_i32 s38, s37, 7")
        a("s_sub_u32 s38, s36, s38")
        a("s_lshr_b32 s39, s35, 1")
        a("s_lshl_b32 s39, s39, 2")
        a("s_add_u32 s39, s39, s37")
        a("s_and_b32 s54, s35, 1")
        a("s_mul_i32 s54, s54, 7")
        a("s_add_u32 s38, s38, s54")
        a("s_waitcnt lgkmcnt(0)")
        make_srd(a, 4, 46, WS_H2, 2048*1024)
        make_srd(a, 8, 40, 0, 512*3584)
        make_srd(a, 12, 42, 0, 512*3584)
        make_srd(a, 16, 46, WS_ACT, 2048*3584)
        a("s_lshl_b32 s24, s39, 17")
        a("s_lshl_b32 s25, s38, 8")
        a("s_mov_b32 s26, s25")
    def epi(a, c):
        acc, TM, TN, T = c['acc'], c['TM'], c['TN'], c['T']
        vo = c['alloc'](); tmp = c['fr'][0]
        a("s_movk_i32 s54, 3584")
        a(f"v_mul_lo_u32 {v(vo)}, {v(T)}, s54")
        a(f"v_lshl_add_u32 {v(vo)}, {v(T+1)}, 4, {v(vo)}")
        a(f"s_mul_i32 s34, s39, {128*3584}")
        a(f"s_mul_i32 s54, s30, {TM*32*3584}")
        a("s_add_u32 s34, s34, s54")
        a("s_lshl_b32 s54, s38, 8")
        a("s_add_u32 s34, s34, s54")
        a("s_lshl_b32 s54, s29, 6")
        a("s_add_u32 s34, s34, s54")
        for mb in range(TM):
            g = acc + mb*16
            u = acc + (TM+mb)*16
            for i in range(16):
                a(f"v_max_f32 {v(g+i)}, 0, {v(g+i)}")
                a(f"v_mul_f32 {v(g+i)}, {v(g+i)}, {v(u+i)}")
            a(f"s_add_u32 s54, s34, {mb*32*3584}")
            store_bf16_perm(a, g, tmp + 8*mb, vo, 16, "s54", 0)
    P = dict(NW=8, WM=2, WN=4, TM=2, TN=2, NST=3, KT=8, lda=1024, ldb=3584, nsub=2, perm=False, nwg=224,
             setup=setup, epilogue=epi)
    return gemm_A(a, "k_gu_kernel", P)

def gen_down(a):
    name = "k_down_kernel"
    NST, KT = 2, 7
    lda, ldb = 3584, 1024
    kernel_begin(a, name)
    end = a.newlabel("end")
    a("s_cmp_ge_u32 s2, 256")
    a(f"s_cbranch_scc1 {end}")
    load_ptr(a, 40, 'wd'); load_ptr(a, 42, 'out'); load_ptr(a, 46, 'ws')
    a("s_and_b32 s35, s2, 7")
    a("s_lshr_b32 s36, s2, 3")
    a("s_lshl_b32 s39, s35, 2")
    a("s_lshr_b32 s37, s36, 3")
    a("s_add_u32 s39, s39, s37")
    a("s_and_b32 s38, s36, 7")
    a("v_and_b32 v1, 63, v0")
    a("v_lshrrev_b32 v2, 6, v0")
    a("s_nop 0")
    a("v_readfirstlane_b32 s28, v2")
    a("s_waitcnt lgkmcnt(0)")
    make_srd(a, 4, 46, WS_ACT, 2048*3584)
    make_srd(a, 8, 40, 0, 1792*1024)
    make_srd(a, 16, 42, 0, 2048*1024)
    make_srd(a, 12, 46, WS_X1, 2048*2048)
    make_srd(a, 20, 46, WS_MOD, 12288)
    T = 4
    lane_decomp(a, 1, T)
    vXd, vWd = 16, 17
    a("s_mov_b32 s29, 0")
    xdma_voff(a, 1, "s29", vXd, 10, lda)
    a(f"v_xor_b32 v18, 64, {v(vXd)}")
    wdma_voff(a, 1, "s29", vWd, 10, ldb, 64)
    a(f"s_mul_i32 s24, s39, {64*lda}")
    a("s_lshl_b32 s54, s28, 7")
    a("s_add_u32 s24, s24, s54")
    a("s_lshl_b32 s25, s28, 16")
    a("s_lshl_b32 s54, s38, 7")
    a("s_add_u32 s25, s25, s54")
    a("s_lshl_b32 s33, s28, 15")
    xa = 20
    xfrag_addrs(a, T, xa, 128, 0, "s33")
    wa = [24, 25]
    for nb in range(2):
        wfrag_addr(a, T, wa[nb], 10, 128, True, nb, 8192)
        a(f"v_add_u32 {v(wa[nb])}, s33, {v(wa[nb])}")
    fr = [28, 44]
    acc = 60
    def dma(t):
        st = t % NST
        out = []
        for j in range(8):
            out.append([f"s_add_u32 m0, s33, {st*16384 + j*1024}",
                        f"s_add_u32 s34, s24, {t*512 + j*8*lda}",
                        f"buffer_load_dwordx4 {v(vXd if j%2==0 else 18)}, s[4:7], s34 offen lds"])
        for j in range(8):
            out.append([f"s_add_u32 m0, s33, {st*16384 + 8192 + j*1024}",
                        f"s_add_u32 s34, s25, {t*256*ldb + j*8*ldb}",
                        f"buffer_load_dwordx4 {v(vWd)}, s[8:11], s34 offen lds"])
        return out
    def reads(t, ks, f):
        st = t % NST
        for mb in range(2):
            a(f"ds_read_b128 {v(f+4*mb,4)}, {v(xa+ks)} offset:{st*16384+mb*4096}")
        for nb in range(2):
            for half in range(2):
                a(f"ds_read_b64_tr_b16 {v(f+8+4*nb+2*half,2)}, {v(wa[nb])} offset:{st*16384+16*ks*128+half*8*128}")
    for t in range(2):
        for g in dma(t):
            for i in g: a(i)
    for t in range(KT):
        a(f"s_waitcnt vmcnt({16 if t < KT-1 else 0})")
        reads(t, 0, fr[0])
        for ks in range(4):
            a("s_waitcnt lgkmcnt(0)")
            if ks < 3: reads(t, ks+1, fr[(ks+1)&1])
            f = fr[ks&1]
            for nb in range(2):
                for mb in range(2):
                    c = acc + (nb*2+mb)*16
                    src = "0" if (t == 0 and ks == 0) else v(c,16)
                    a(f"{MF} {v(c,16)}, {v(f+8+4*nb,4)}, {v(f+4*mb,4)}, {src}")
        if t+2 < KT:
            for g in dma(t+2):
                for i in g: a(i)
    a("s_nop 15")
    a("s_barrier")
    a("v_lshlrev_b32 v26, 4, v1")
    a("s_lshl_b32 s54, s28, 14")
    a("v_add_u32 v27, s54, v26")
    for tl in range(4):
        for q in range(4):
            a(f"ds_write_b128 v27, {v(acc+tl*16+4*q,4)} offset:{tl*4096+q*1024}")
    a("s_waitcnt lgkmcnt(0)")
    a("s_barrier")
    a("s_lshl_b32 s54, s28, 12")
    a("v_add_u32 v27, s54, v26")
    a("s_lshr_b32 s29, s28, 1")
    a("s_and_b32 s30, s28, 1")
    a("s_lshl_b32 s54, s39, 6")
    a("s_lshl_b32 s55, s30, 5")
    a("s_add_u32 s54, s54, s55")
    a("s_lshl_b32 s55, s38, 6")
    a("s_lshl_b32 s56, s29, 5")
    a("s_add_u32 s55, s55, s56")
    a("s_lshl_b32 s56, s54, 11")
    a("s_lshl_b32 s57, s55, 2")
    a("s_add_u32 s56, s56, s57")
    a("s_add_u32 s57, s57, 10240")
    a("s_lshr_b32 s58, s56, 1")
    a(f"v_lshlrev_b32 v10, 11, {v(T)}")
    a(f"v_lshl_add_u32 v10, {v(T+1)}, 4, v10")
    a(f"v_lshlrev_b32 v11, 4, {v(T+1)}")
    a("v_lshrrev_b32 v12, 1, v10")
    for q in range(4):
        a(f"buffer_load_dwordx4 {v(28+4*q,4)}, v10, s[12:15], s56 offen offset:{q*32}")
        a(f"buffer_load_dwordx4 {v(44+4*q,4)}, v11, s[20:23], s57 offen offset:{q*32}")
    for w in range(4):
        for q in range(4):
            a(f"ds_read_b128 {v(acc+w*16+4*q,4)}, v27 offset:{w*16384+q*1024}")
        if w == 2: a("s_waitcnt lgkmcnt(0)")
    a("s_waitcnt lgkmcnt(0)")
    for w in range(1, 4):
        for i in range(16):
            a(f"v_add_f32 {v(acc+i)}, {v(acc+i)}, {v(acc+16*w+i)}")
    a("s_waitcnt vmcnt(0)")
    for i in range(16):
        a(f"v_fmac_f32 {v(28+i)}, {v(acc+i)}, {v(44+i)}")
    for q in range(4):
        a(f"v_cvt_pk_bf16_f32 {v(acc+16+2*q)}, {v(28+4*q)}, {v(28+4*q+1)}")
        a(f"v_cvt_pk_bf16_f32 {v(acc+16+2*q+1)}, {v(28+4*q+2)}, {v(28+4*q+3)}")
        a(f"buffer_store_dwordx2 {v(acc+16+2*q,2)}, v12, s[16:19], s58 offen offset:{q*16}")
    a.label(end)
    a("s_endpgm")
    return name, acc+64, (256, 256, 131072)
```

```python
from common import *

def gen_mod(a):
    name = "k_mod_kernel"
    kernel_begin(a, name)
    a("s_cmp_ge_u32 s2, 48")
    a(f"s_cbranch_scc1 .Lmod_end")
    load_ptr(a, 4, 'c'); load_ptr(a, 6, 'wmod'); load_ptr(a, 8, 'ws')
    a("v_and_b32 v1, 7, v0")
    a("v_lshrrev_b32 v2, 3, v0")
    a("s_waitcnt lgkmcnt(0)")
    make_srd(a, 12, 4, 0, 1024)
    make_srd(a, 16, 6, 0, 512*6144)
    make_srd(a, 20, 8, WS_MOD, 12288)
    a("v_lshlrev_b32 v3, 5, v2")
    a("buffer_load_dwordx4 v[8:11], v3, s[12:15], 0 offen")
    a("buffer_load_dwordx4 v[12:15], v3, s[12:15], 0 offen offset:16")
    a("s_mov_b32 s24, 98304")
    a("v_mul_lo_u32 v4, v2, s24")
    a("v_lshl_add_u32 v4, v1, 4, v4")
    a("s_lshl_b32 s25, s2, 7")
    for j in range(16):
        a(f"s_add_u32 s26, s25, {j*6144}")
        a(f"buffer_load_dwordx4 {v(48+4*j,4)}, v4, s[16:19], s26 offen")
    a("s_waitcnt vmcnt(16)")
    unpack8(a, 8, 16); unpack8(a, 12, 24)
    for j in range(16):
        a(f"v_mul_f32 v5, 0xbfb8aa3b, {v(16+j)}")
        a("v_exp_f32 v5, v5")
        a("s_nop 0")
        a("v_add_f32 v5, 1.0, v5")
        a("v_rcp_f32 v5, v5")
        a("s_nop 0")
        a(f"v_mul_f32 v5, v5, {v(16+j)}")
        round_bf16(a, 16+j, 5)
    for i in range(8):
        a(f"v_mov_b32 {v(32+i)}, 0")
    for j in range(16):
        a(f"s_waitcnt vmcnt({15-j})")
        unpack8(a, 48+4*j, 40)
        for i in range(8):
            a(f"v_fmac_f32 {v(32+i)}, {v(40+i)}, {v(16+j)}")
    a("v_lshlrev_b32 v5, 8, v2")
    a("v_lshl_add_u32 v5, v1, 5, v5")
    a("ds_write_b128 v5, v[32:35]")
    a("ds_write_b128 v5, v[36:39] offset:16")
    a("s_waitcnt lgkmcnt(0)")
    a("s_barrier")
    a("v_cmp_gt_u32 vcc, 64, v0")
    a("s_and_saveexec_b64 s[28:29], vcc")
    a("s_cbranch_execz .Lmod_end")
    a("v_lshlrev_b32 v5, 2, v0")
    for j in range(32):
        a(f"ds_read_b32 {v(48+j)}, v5 offset:{j*256}")
        if j == 14: a("s_waitcnt lgkmcnt(0)")
        if j == 29: a("s_waitcnt lgkmcnt(0)")
    a("s_waitcnt lgkmcnt(0)")
    a("v_add_f32 v6, v48, v49")
    for j in range(2, 32):
        a(f"v_add_f32 v6, v6, {v(48+j)}")
    round_bf16(a, 6, 6)
    a("s_lshr_b32 s24, s2, 3")
    a("s_cmp_eq_u32 s24, 1")
    a("s_cselect_b32 s25, 1.0, 0")
    a("s_cmp_eq_u32 s24, 4")
    a("s_cselect_b32 s25, 1.0, s25")
    a("v_add_f32 v6, s25, v6")
    round_bf16(a, 6, 6)
    a("s_lshl_b32 s24, s2, 8")
    a("buffer_store_dword v6, v5, s[20:23], s24 offen")
    a.label(".Lmod_end")
    a("s_endpgm")
    return name, 112, (48, 256, 8192)

def gen_ln2(a, nsplit):
    name = "k_ln2_kernel"
    kernel_begin(a, name)
    a("s_cmp_ge_u32 s2, 512")
    a("s_cbranch_scc1 .Lln2_end")
    load_ptr(a, 4, 'x'); load_ptr(a, 6, 'ws')
    a("v_and_b32 v1, 63, v0")
    a("v_lshrrev_b32 v2, 6, v0")
    a("s_lshl_b32 s3, s2, 2")
    a("v_add_u32 v2, s3, v2")
    a("s_waitcnt lgkmcnt(0)")
    make_srd(a, 8, 4, 0, 2048*1024)
    make_srd(a, 12, 6, WS_MOD, 12288)
    make_srd(a, 16, 6, WS_PART, nsplit*2048*2048)
    make_srd(a, 20, 6, WS_X1, 2048*2048)
    make_srd(a, 24, 6, WS_H2, 2048*1024)
    a("v_lshlrev_b32 v3, 5, v1")
    a("v_lshl_add_u32 v4, v2, 11, v3")
    a("v_lshrrev_b32 v5, 1, v4")
    a("buffer_load_dwordx4 v[8:11], v5, s[8:11], 0 offen")
    a("s_mov_b32 s28, 4096")
    a("buffer_load_dwordx4 v[12:15], v3, s[12:15], s28 offen")
    a("buffer_load_dwordx4 v[16:19], v3, s[12:15], s28 offen offset:16")
    for p in range(nsplit):
        a(f"s_mov_b32 s29, {p*2048*2048}")
        a(f"buffer_load_dwordx4 {v(32+8*p,4)}, v4, s[16:19], s29 offen")
        a(f"buffer_load_dwordx4 {v(36+8*p,4)}, v4, s[16:19], s29 offen offset:16")
    a("s_waitcnt vmcnt(0)")
    unpack8(a, 8, 20)
    for p in range(1, nsplit):
        for i in range(8):
            a(f"v_add_f32 {v(32+i)}, {v(32+i)}, {v(32+8*p+i)}")
    for i in range(8):
        a(f"v_fmac_f32 {v(20+i)}, {v(32+i)}, {v(12+i)}")
    a("buffer_store_dwordx4 v[20:23], v4, s[20:23], 0 offen")
    a("buffer_store_dwordx4 v[24:27], v4, s[20:23], 0 offen offset:16")
    for i in range(8):
        a(f"v_mov_b32 {v(72+i)}, {v(20+i)}")
    ln_row(a, 72, 80, 12, 3, 1536, 2048, 8)
    a("buffer_store_dwordx4 v[8:11], v5, s[24:27], 0 offen")
    a.label(".Lln2_end")
    a("s_endpgm")
    return name, 104, (512, 256, 0)
```

```python
import sys
from common import *
from small import *
from kernels import *
from attn import *
hdr = open('adaLN_cond__compressed_kv_cla__glu_gated_reglu__prompt.s.ref').read().split('; Override launch')[0]
a = Asm()
ks = []
for g in (gen_mod, gen_kv, gen_attn, gen_oproj, lambda a: gen_ln2(a, 4), gen_gu, gen_down):
    ks.append(g(a))
out = hdr
for name, nv, (gx, bx, lds) in ks:
    out += f"; @launch kernel={name} grid=({gx},1,1) block=({bx},1,1) lds={lds}\n"
out += '.amdgcn_target "amdgcn-amd-amdhsa--gfx950"\n.text\n'
out += a.text()
out += '.section .rodata,"a"\n'
for name, nv, _ in ks:
    out += kernel_desc(name, nv)
    print(name, nv, _)
open(sys.argv[1] if len(sys.argv) > 1 else 'adaLN_cond__compressed_kv_cla__glu_gated_reglu__prompt.s', 'w').write(out)
```

```python
from common import *
from gemm import *
from kernels import store_bf16_perm
import math, struct

def f2u(x): return struct.unpack('<I', struct.pack('<f', x))[0]
CSCF = math.log2(math.e) / math.sqrt(128.0)
CSC = f2u(CSCF)
NEG = f2u(-1e30)
THR = f2u(8.0)

import os
PM = int(os.environ.get('PM', 1)); PS = int(os.environ.get('PS', 0))
def gen_attn(a, D=6, dbg=False):
    name = "k_attn_kernel"
    def stamp(k, adj=0):
        if not dbg: return
        a("s_memtime s[80:81]")
        a("s_mul_i32 s82, s54, 3")
        a(f"s_add_i32 m0, s82, {k%3 - 3*adj}")
        a("s_waitcnt lgkmcnt(0)")
        a(f"v_writelane_b32 v{(3,9)[k//3]}, s80, m0")
    def stampx(idx):
        if not dbg: return
        a("s_memtime s[80:81]")
        a("s_waitcnt lgkmcnt(0)")
        a(f"v_writelane_b32 v3, s80, {idx}")
    T = 4
    vXd, vWd, vKd, vVd = 16, 17, 18, 19
    KA_, VA_ = 20, 28
    vM, vL, vMC, vD, vMX, vT, vAL, vR4 = 32, 34, 36, 38, 39, 40, 42, 44
    QF, S, P, O, FR, NM = 48, 80, 112, 128, 192, 240
    XA_ = [S, S+8, S+16]
    QS = 131072
    QST = 49152
    kernel_begin(a, name)
    end = a.newlabel("end")
    a("s_cmp_ge_u32 s2, 256")
    a(f"s_cbranch_scc1 {end}")
    stampx(51)
    load_ptr(a, 40, 'wq'); load_ptr(a, 46, 'ws')
    a("s_and_b32 s35, s2, 7")
    a("s_lshr_b32 s36, s2, 3")
    a("s_and_b32 s37, s36, 3")
    a("s_lshl_b32 s38, s35, 2")
    a("s_add_u32 s37, s37, s38")
    a("s_lshr_b32 s38, s36, 2")
    a("s_sub_u32 s39, 15, s38")
    a("v_and_b32 v1, 63, v0")
    a("v_lshrrev_b32 v2, 6, v0")
    a("s_nop 0")
    a("v_readfirstlane_b32 s28, v2")
    a("s_waitcnt lgkmcnt(0)")
    a("s_lshr_b32 s29, s28, 2")
    a("s_and_b32 s30, s28, 3")
    make_srd(a, 4, 46, WS_H, 2048*1024)
    make_srd(a, 8, 40, 0, 512*8192)
    a("s_lshl_b32 s50, s37, 19")
    a("s_add_u32 s52, s46, s50")
    a("s_addc_u32 s53, s47, 0")
    make_srd(a, 12, 52, WS_K, 2048*256)
    make_srd(a, 16, 52, WS_V, 2048*256)
    make_srd(a, 20, 46, WS_CTX, 2048*8192)
    lane_decomp(a, 1, T)
    xdma_voff(a, 1, "s28", vXd, 10, 1024)
    wdma_voff(a, 1, "s28", vWd, 10, 8192, 128)
    a("s_lshl_b32 s33, s28, 10")
    a("s_lshl_b32 s24, s38, 17")
    a("s_lshl_b32 s25, s39, 17")
    a("s_lshl_b32 s26, s37, 8")
    def qdma(t):
        st = (t % 3)*QST
        out = []
        for jj in range(4):
            out.append([f"s_add_u32 m0, s33, {st + jj*8192}",
                        f"s_add_u32 s34, s{24 + (jj>>1)}, {t*128 + (jj&1)*64*1024}",
                        f"buffer_load_dwordx4 {v(vXd)}, s[4:7], s34 offen lds"])
        for jj in range(2):
            out.append([f"s_add_u32 m0, s33, {st + 32768 + jj*8192}",
                        f"s_add_u32 s34, s26, {t*64*8192 + jj*32*8192}",
                        f"buffer_load_dwordx4 {v(vWd)}, s[8:11], s34 offen lds"])
        return out
    for t in range(3):
        for g in qdma(t):
            for i in g: a(i)
    wdma_voff(a, 1, "s30", vVd, 10, 256, 128)
    a(f"v_lshrrev_b32 {v(vKd)}, 4, v1")
    a("s_lshl_b32 s50, s30, 2")
    a(f"v_add_u32 {v(vKd)}, s50, {v(vKd)}")
    a(f"v_xor_b32 v10, {v(vKd)}, v1")
    a("v_and_b32 v10, 15, v10")
    a(f"v_lshlrev_b32 {v(vKd)}, 8, {v(vKd)}")
    a(f"v_lshl_add_u32 {v(vKd)}, v10, 4, {v(vKd)}")
    a(f"v_and_b32 v10, 15, {v(T)}")
    a(f"v_xor_b32 v10, v10, {v(T+1)}")
    a("v_lshlrev_b32 v10, 4, v10")
    a(f"v_lshl_add_u32 v10, {v(T)}, 8, v10")
    a("s_lshl_b32 s50, s29, 16")
    a("s_add_u32 s51, s50, 32768")
    a(f"v_add_u32 {v(KA_)}, s51, v10")
    for i in range(1, 8):
        a(f"v_xor_b32 {v(KA_+i)}, {i<<5}, {v(KA_)}")
    for db in range(4):
        wfrag_addr(a, T, VA_+db, 10, 256, True, db, 0)
        a(f"v_add_u32 {v(VA_+db)}, s50, {v(VA_+db)}")
    a("s_lshl_b32 s51, s30, 10")
    a("s_add_u32 s31, s50, s51")
    a("s_add_u32 s32, s31, 32768")
    a("s_lshl_b32 s50, s28, 12")
    xfrag_addrs(a, T, XA_[0], 128, 0, "s50")
    for nb in range(4):
        wfrag_addr(a, T, XA_[0]+4+nb, 10, 256, False, nb, 32768)
    for st in (1, 2):
        for i in range(8):
            a(f"v_add_u32 {v(XA_[st]+i)}, {hex(st*QST)}, {v(XA_[0]+i)}")
    a("s_lshl_b32 s50, s38, 1")
    a("s_add_u32 s57, s50, 2")
    a("s_sub_u32 s55, 15, s50")
    a("s_cmp_eq_u32 s29, 0")
    a("s_cselect_b32 s57, s57, 99")
    a("s_cselect_b32 s55, 0, s55")
    a("s_cselect_b32 s59, s38, s39")
    a("s_lshl_b32 s59, s59, 7")
    a("s_lshl_b32 s50, s30, 5")
    a("s_add_u32 s59, s59, s50")
    a("s_mov_b32 s54, 0")
    a(f"s_mov_b32 s60, {hex(CSC)}")
    a(f"s_mov_b32 s61, {hex(CSC)}")
    a(f"s_mov_b32 s58, {hex(NEG)}")
    a(f"s_mov_b32 s70, {hex(THR)}")
    a(f"v_lshlrev_b32 v10, 2, {v(T+1)}")
    a(f"v_sub_u32 {v(vR4)}, {v(T)}, v10")
    def kdma(stile, sl):
        return [[f"s_add_u32 m0, s32, {jj*4096 + sl*16384}",
                 f"s_add_u32 s34, {stile}, {jj*16*256}",
                 f"buffer_load_dwordx4 {v(vKd)}, s[12:15], s34 offen lds"] for jj in range(4)]
    def vdma(stile, sl):
        return [[f"s_add_u32 m0, s31, {jj*4096 + sl*16384}",
                 f"s_add_u32 s34, {stile}, {jj*16*256}",
                 f"buffer_load_dwordx4 {v(vVd)}, s[16:19], s34 offen lds"] for jj in range(4)]
    def qreads(t, ks, f):
        xa = XA_[t % 3]
        a(f"ds_read_b128 {v(f,4)}, {v(xa+ks)}")
        for nb in range(4):
            for half in range(2):
                a(f"ds_read_b64_tr_b16 {v(f+4+4*nb+2*half,2)}, {v(xa+4+nb)} offset:{16*ks*256+half*1024}")
    fr = [FR, FR+20]
    a("s_lshl_b32 s27, s55, 14")
    a("s_waitcnt vmcnt(12)")
    a("s_barrier")
    qreads(0, 0, fr[0])
    d = []
    for t in range(8):
        for ks in range(4):
            a("s_waitcnt lgkmcnt(0)")
            if ks < 3: qreads(t, ks+1, fr[(ks+1)&1])
            elif t < 7:
                a(f"s_waitcnt vmcnt({6 if t < 6 else 0})")
                a("s_barrier")
                stampx(52+t)
                qreads(t+1, 0, fr[0])
                d = qdma(t+3) if t < 5 else (kdma("s27", 0) if t == 6 else [])
            f = fr[ks&1]
            for nb in range(4):
                c = O + nb*16
                src = "0" if (t == 0 and ks == 0) else v(c,16)
                a(f"{MF} {v(c,16)}, {v(f+4+4*nb,4)}, {v(f,4)}, {src}")
                if d:
                    for i in d.pop(0): a(i)
    a("v_lshlrev_b32 v11, 4, v1")
    a("s_lshl_b32 s50, s30, 13")
    a(f"s_add_u32 s50, s50, {QS}")
    a("v_add_u32 v11, s50, v11")
    a(f"v_mov_b32 {v(vL)}, 0")
    a(f"v_mov_b32 {v(vL+1)}, 0")
    for i in range(16): a(f"v_mov_b32 {v(NM+i)}, 0")
    a("s_mov_b32 s70, s58")
    a("s_mov_b32 s71, 0")
    for i in range(32):
        a(f"v_mul_f32 {v(O+2*i)}, s60, {v(O+2*i)}")
        a(f"v_mul_f32 {v(O+2*i+1)}, s60, {v(O+2*i+1)}")
        a(f"v_cvt_pk_bf16_f32 {v(QF+i)}, {v(O+2*i)}, {v(O+2*i+1)}")
    ng1 = a.newlabel("ng1")
    a("s_cmp_eq_u32 s29, 0")
    a(f"s_cbranch_scc1 {ng1}")
    for i in range(8):
        a(f"ds_write_b128 v11, {v(QF+4*i,4)} offset:{i*1024}")
    a("s_waitcnt vmcnt(0) lgkmcnt(0)")
    a("s_barrier")
    a.label(ng1)
    a("s_waitcnt vmcnt(0) lgkmcnt(0)")
    a("s_barrier")
    vorder = [(ks, db) for ks in range(4) for db in range(4)]
    korder = [(kb, ks) for ks in range(8) for kb in range(2)]
    def fload(i, vs, ksl):
        sl = FR + 4*(i % 12)
        if i < 16:
            ks, db = vorder[i]
            for half in range(2):
                a(f"ds_read_b64_tr_b16 {v(sl+2*half,2)}, {v(VA_+db)} offset:{ks*4096+half*2048+vs*16384}")
        else:
            kb, ks = korder[i-16]
            a(f"ds_read_b128 {v(sl,4)}, {v(KA_+ks)} offset:{kb*8192+ksl*16384}")
    def nin(i): return 2 if i < 16 else 1
    def mfma(i):
        sl = FR + 4*(i % 12)
        if i < 16:
            ks, db = vorder[i]
            c = O + db*16
            a(f"{MF} {v(c,16)}, {v(sl,4)}, {v(P+4*ks,4)}, {v(c,16)}")
        else:
            kb, ks = korder[i-16]
            c = S + kb*16
            src = v(NM,16) if ks == 0 else v(c,16)
            a(f"{MF} {v(c,16)}, {v(sl,4)}, {v(QF+4*ks,4)}, {src}")
    def tiles():
        a("s_lshl_b32 s27, s55, 14")
        a("s_add_u32 s56, s55, 1")
        a("s_add_u32 s50, s54, 1")
        a("s_cmp_eq_u32 s50, s57")
        a("s_cselect_b32 s56, 0, s56")
        a("s_lshl_b32 s62, s56, 14")
    loop = a.newlabel("loop"); qk = a.newlabel("qk")
    stampx(60)
    tiles()
    for i in range(16, 16+D): fload(i, 0, 0)
    for g in vdma("s27", 0) + kdma("s62", 1):
        for i in g: a(i)
    a(f"s_branch {qk}")
    a.label(loop)
    for par in range(2):
        stamp(0)
        d = vdma("s27", par) + kdma("s62", 1-par)
        for i in range(32):
            if i == 16 and par == 0: a.label(qk)
            cnt = sum(nin(k) for k in range(i+1, min(32, i+D)))
            a(f"s_waitcnt lgkmcnt({cnt})")
            mfma(i)
            if i + D < 32: fload(i+D, 1-par, par)
            if d and i < 16:
                for x in d.pop(0): a(x)
        stamp(1)
        a("s_lshl_b32 s50, s55, 6")
        a("s_nop 5")
        a("s_waitcnt vmcnt(4)")
        a("s_barrier")
        stamp(3)
        nofin = a.newlabel("nofin")
        a("s_cmp_lg_u32 s54, s57")
        a(f"s_cbranch_scc1 {nofin}")
        a(f"v_add_f32 {v(vL)}, {v(vL)}, {v(vL+1)}")
        a(f"v_mov_b32 {v(vT)}, {v(vL)}")
        a("s_nop 1")
        a(f"v_permlane32_swap_b32 {v(vL)}, {v(vT)}")
        a("s_nop 1")
        a(f"v_add_f32 {v(vL)}, {v(vL)}, {v(vT)}")
        a(f"v_rcp_f32 {v(vAL)}, {v(vL)}")
        a("s_lshl_b32 s51, s59, 13")
        a("s_add_u32 s51, s51, s26")
        a(f"v_lshlrev_b32 v13, 13, {v(T)}")
        a(f"v_lshl_add_u32 v13, {v(T+1)}, 4, v13")
        for db in range(4):
            for i in range(16):
                a(f"v_mul_f32 {v(O+16*db+i)}, {v(O+16*db+i)}, {v(vAL)}")
            store_bf16_perm(a, O+16*db, FR+8*db, 13, 20, "s51", db*64)
        a("s_mov_b32 s70, s58")
        a("s_mov_b32 s71, 0")
        a("s_lshl_b32 s59, s39, 7")
        a("s_lshl_b32 s51, s30, 5")
        a("s_add_u32 s59, s59, s51")
        a.label(nofin)
        nomask = a.newlabel("nomask")
        a("s_sub_i32 s50, s59, s50")
        a("s_cmp_ge_i32 s50, 63")
        a(f"s_cbranch_scc1 {nomask}")
        a(f"v_add_u32 {v(vD)}, s50, {v(vR4)}")
        a(f"v_mov_b32 {v(vT)}, s58")
        seq = [(kb*16+r, 32*kb + (r&3) + 8*(r>>2)) for kb in range(2) for r in range(16)]
        for i in range(32 + 3):
            if i < 32:
                a(f"v_cmp_ge_i32 {s(72+2*(i%4),2)}, {v(vD)}, {seq[i][1]}")
            else:
                a("s_nop 0")
            if i >= 3:
                j = i - 3
                a(f"v_cndmask_b32 {v(S+seq[j][0])}, {v(vT)}, {v(S+seq[j][0])}, {s(72+2*(j%4),2)}")
        a.label(nomask)
        stamp(2)
        a(f"v_max3_f32 {v(vMX)}, {v(S)}, {v(S+1)}, {v(S+2)}")
        a(f"v_max3_f32 {v(vT)}, {v(S+3)}, {v(S+4)}, {v(S+5)}")
        for i in range(6, 30, 4):
            a(f"v_max3_f32 {v(vMX)}, {v(vMX)}, {v(S+i)}, {v(S+i+1)}")
            a(f"v_max3_f32 {v(vT)}, {v(vT)}, {v(S+i+2)}, {v(S+i+3)}")
        a(f"v_max3_f32 {v(vMX)}, {v(vMX)}, {v(S+30)}, {v(S+31)}")
        a(f"v_max_f32 {v(vMX)}, {v(vMX)}, {v(vT)}")
        a(f"v_cmp_lt_f32 vcc, s70, {v(vMX)}")
        nores = a.newlabel("nores")
        a(f"s_cbranch_vccz {nores}")
        a(f"v_mov_b32 {v(vT)}, {v(vMX)}")
        a("s_min_i32 s51, s70, 0")
        a("s_nop 0")
        a(f"v_permlane32_swap_b32 {v(vMX)}, {v(vT)}")
        a("s_nop 1")
        a(f"v_max3_f32 {v(vMX)}, {v(vMX)}, {v(vT)}, s51")
        a(f"v_exp_f32 {v(vAL)}, -{v(vMX)}")
        for i in range(16): a(f"v_sub_f32 {v(NM+i)}, {v(NM+i)}, {v(vMX)}")
        a(f"v_min_f32 {v(vAL)}, 1.0, {v(vAL)}")
        a(f"v_mul_f32 {v(vAL)}, s71, {v(vAL)}")
        for i in range(32): a(f"v_sub_f32 {v(S+i)}, {v(S+i)}, {v(vMX)}")
        a(f"v_mul_f32 {v(vL)}, {v(vL)}, {v(vAL)}")
        a(f"v_mul_f32 {v(vL+1)}, {v(vL+1)}, {v(vAL)}")
        for i in range(64):
            a(f"v_mul_f32 {v(O+i)}, {v(O+i)}, {v(vAL)}")
        a(f"s_mov_b32 s70, {hex(THR)}")
        a("s_mov_b32 s71, 1.0")
        a.label(nores)
        stamp(4)
        noq = a.newlabel("noq")
        a("s_add_u32 s54, s54, 1")
        a("s_cmp_lg_u32 s54, s57")
        a(f"s_cbranch_scc1 {noq}")
        for i in range(8):
            a(f"ds_read_b128 {v(QF+4*i,4)}, v11 offset:{i*1024}")
        a("s_waitcnt lgkmcnt(2)")
        a.label(noq)
        a("s_mov_b32 s55, s56")
        for i in range(16):
            a(f"v_exp_f32 {v(S+2*i)}, {v(S+2*i)}")
            a(f"v_exp_f32 {v(S+2*i+1)}, {v(S+2*i+1)}")
            if i >= 1:
                a(f"v_cvt_pk_bf16_f32 {v(P+i-1)}, {v(S+2*i-2)}, {v(S+2*i-1)}")
                a(f"v_add_f32 {v(vL)}, {v(vL)}, {v(S+2*i-2)}")
                a(f"v_add_f32 {v(vL+1)}, {v(vL+1)}, {v(S+2*i-1)}")
            if i == 2: tiles()
            if 8 <= i < 8 + D: fload(i-8, par, 0)
        stamp(5, 1)
        a("s_cmp_lt_u32 s54, 17")
        a(f"v_cvt_pk_bf16_f32 {v(P+15)}, {v(S+30)}, {v(S+31)}")
        a(f"v_add_f32 {v(vL)}, {v(vL)}, {v(S+30)}")
        a(f"v_add_f32 {v(vL+1)}, {v(vL+1)}, {v(S+31)}")
        a("s_waitcnt vmcnt(0)")
        a("s_barrier")
        if par == 0:
            a(f"s_cbranch_scc0 .Lattn_fin")
        else:
            a(f"s_branch {loop}")
    a.label(".Lattn_fin")
    for i in range(16):
        cnt = sum(nin(k) for k in range(i+1, min(16, i+D)))
        a(f"s_waitcnt lgkmcnt({cnt})")
        mfma(i)
        if i + D < 16: fload(i+D, 0, 0)
    stampx(61)
    a(f"v_add_f32 {v(vL)}, {v(vL)}, {v(vL+1)}")
    a(f"v_mov_b32 {v(vT)}, {v(vL)}")
    a("s_nop 1")
    a(f"v_permlane32_swap_b32 {v(vL)}, {v(vT)}")
    a("s_nop 1")
    a(f"v_add_f32 {v(vM+1)}, {v(vL)}, {v(vT)}")
    a(f"v_sub_f32 {v(vM)}, 0, {v(NM)}")
    a("s_lshl_b32 s50, s29, 16")
    a("s_lshl_b32 s51, s30, 13")
    a("s_add_u32 s51, s51, s50")
    a("s_add_u32 s51, s51, 32768")
    a("s_xor_b32 s50, s51, 0x10000")
    a("v_lshlrev_b32 v13, 4, v1")
    a("v_add_u32 v14, s51, v13")
    a("v_add_u32 v15, s50, v13")
    a("v_lshlrev_b32 v13, 3, v1")
    a("s_lshl_b32 s51, s28, 9")
    a(f"s_add_u32 s51, s51, {QS}")
    a("s_xor_b32 s50, s51, 0x800")
    a("v_add_u32 v12, s51, v13")
    a("v_add_u32 v13, s50, v13")
    a(f"ds_write_b64 v12, {v(vM,2)}")
    a("s_nop 4")
    g1 = a.newlabel("g1"); gj = a.newlabel("gj")
    a("s_cmp_eq_u32 s29, 1")
    a(f"s_cbranch_scc1 {g1}")
    for i in range(8):
        a(f"ds_write_b128 v14, {v(O+32+4*i,4)} offset:{i*1024}")
    a("s_waitcnt lgkmcnt(0)")
    a("s_barrier")
    a(f"s_branch {gj}")
    a.label(g1)
    for i in range(8):
        a(f"ds_write_b128 v14, {v(O+4*i,4)} offset:{i*1024}")
    a("s_waitcnt lgkmcnt(0)")
    for i in range(32):
        a(f"v_mov_b32 {v(O+i)}, {v(O+32+i)}")
    a.label(gj)
    a("s_barrier")
    a(f"ds_read_b64 {v(S,2)}, v13")
    for i in range(8):
        a(f"ds_read_b128 {v(O+32+4*i,4)}, v15 offset:{i*1024}")
    a("s_waitcnt lgkmcnt(8)")
    a(f"v_max_f32 {v(vMX)}, {v(vM)}, {v(S)}")
    a(f"v_sub_f32 {v(vAL)}, {v(vM)}, {v(vMX)}")
    a(f"v_sub_f32 {v(vT)}, {v(S)}, {v(vMX)}")
    a(f"v_exp_f32 {v(vAL)}, {v(vAL)}")
    a(f"v_exp_f32 {v(vT)}, {v(vT)}")
    a("s_nop 0")
    a(f"v_mul_f32 {v(vL)}, {v(vM+1)}, {v(vAL)}")
    a(f"v_fmac_f32 {v(vL)}, {v(S+1)}, {v(vT)}")
    a(f"v_rcp_f32 {v(vL)}, {v(vL)}")
    a("s_nop 0")
    a(f"v_mul_f32 {v(vAL)}, {v(vAL)}, {v(vL)}")
    a(f"v_mul_f32 {v(vT)}, {v(vT)}, {v(vL)}")
    a("s_lshl_b32 s50, s59, 13")
    a("s_add_u32 s50, s50, s26")
    a("s_lshl_b32 s51, s29, 7")
    a("s_add_u32 s50, s50, s51")
    a(f"v_lshlrev_b32 v13, 13, {v(T)}")
    a(f"v_lshl_add_u32 v13, {v(T+1)}, 4, v13")
    a("s_waitcnt lgkmcnt(0)")
    for i in range(32):
        a(f"v_mul_f32 {v(O+i)}, {v(O+i)}, {v(vAL)}")
        a(f"v_fmac_f32 {v(O+i)}, {v(O+32+i)}, {v(vT)}")
    for db in range(2):
        store_bf16_perm(a, O+16*db, FR+8*db, 13, 20, "s50", db*64)
    stampx(62)
    if dbg:
        a("s_waitcnt vmcnt(0)")
        stampx(63)
        make_srd(a, 84, 46, 0x8000000, 256*8*512)
        a("s_lshl_b32 s50, s2, 12")
        a("s_lshl_b32 s51, s28, 9")
        a("s_add_u32 s50, s50, s51")
        a("v_lshlrev_b32 v13, 2, v1")
        a("buffer_store_dword v3, v13, s[84:87], s50 offen")
        a("buffer_store_dword v9, v13, s[84:87], s50 offen offset:256")
    a.label(end)
    a("s_endpgm")
    return name, 256, (256, 512, 163840)
```

```python
class Asm:
    def __init__(self):
        self.lines = []
        self.uid = 0
    def __call__(self, s):
        self.lines.append("    " + s)
    def label(self, s):
        self.lines.append(s + ":")
    def raw(self, s):
        self.lines.append(s)
    def newlabel(self, p="L"):
        self.uid += 1
        return f".{p}_{self.uid}"
    def text(self):
        return "\n".join(self.lines) + "\n"

KA = dict(x=0, ckv=8, wq=16, wuk=24, wuv=32, wo=40, bx=48, wg=56, wu=64, wd=72, c=80, wmod=88, out=96, dbg=104, ws=112)
WS_MOD = 0
WS_H = 0x10000
WS_K = 0x400000
WS_V = 0x1400000
WS_CTX = 0x2400000
WS_PART = 0x3400000
WS_X1 = 0x4400000
WS_H2 = 0x4800000
WS_ACT = 0x4C00000

def v(i, n=1):
    return f"v{i}" if n == 1 else f"v[{i}:{i+n-1}]"
def s(i, n=1):
    return f"s{i}" if n == 1 else f"s[{i}:{i+n-1}]"

def kernel_begin(a, name):
    a.raw(f".globl {name}")
    a.raw(".p2align 8")
    a.raw(f".type {name},@function")
    a.label(name)

def kernel_desc(name, nvgpr, nsgpr=102):
    acc = (nvgpr + 3) // 4 * 4
    return f""".p2align 6
.amdhsa_kernel {name}
  .amdhsa_next_free_vgpr {nvgpr}
  .amdhsa_next_free_sgpr {nsgpr}
  .amdhsa_accum_offset {acc}
  .amdhsa_group_segment_fixed_size 0
  .amdhsa_kernarg_size 120
  .amdhsa_user_sgpr_count 2
  .amdhsa_user_sgpr_kernarg_segment_ptr 1
  .amdhsa_system_sgpr_workgroup_id_x 1
.end_amdhsa_kernel
"""

def load_ptr(a, sreg, key):
    a(f"s_load_dwordx2 {s(sreg,2)}, s[0:1], {KA[key]}")

def make_srd(a, d, ptr, off, nbytes):
    if off:
        a(f"s_add_u32 {s(d)}, {s(ptr)}, {hex(off)}")
        a(f"s_addc_u32 {s(d+1)}, {s(ptr+1)}, 0")
        a(f"s_and_b32 {s(d+1)}, {s(d+1)}, 0xffff")
    else:
        a(f"s_mov_b32 {s(d)}, {s(ptr)}")
        a(f"s_and_b32 {s(d+1)}, {s(ptr+1)}, 0xffff")
    a(f"s_mov_b32 {s(d+2)}, {hex(nbytes)}")
    a(f"s_mov_b32 {s(d+3)}, 0x20000")

def wave_sum(a, x, t):
    a("s_nop 1")
    a(f"v_add_f32_dpp {v(x)}, {v(x)}, {v(x)} quad_perm:[1,0,3,2] row_mask:0xf bank_mask:0xf")
    a("s_nop 1")
    a(f"v_add_f32_dpp {v(x)}, {v(x)}, {v(x)} quad_perm:[2,3,0,1] row_mask:0xf bank_mask:0xf")
    a("s_nop 1")
    a(f"v_add_f32_dpp {v(x)}, {v(x)}, {v(x)} row_half_mirror row_mask:0xf bank_mask:0xf")
    a("s_nop 1")
    a(f"v_add_f32_dpp {v(x)}, {v(x)}, {v(x)} row_mirror row_mask:0xf bank_mask:0xf")
    a(f"v_mov_b32 {v(t)}, {v(x)}")
    a("s_nop 1")
    a(f"v_permlane16_swap_b32 {v(x)}, {v(t)}")
    a("s_nop 1")
    a(f"v_add_f32 {v(x)}, {v(x)}, {v(t)}")
    a(f"v_mov_b32 {v(t)}, {v(x)}")
    a("s_nop 1")
    a(f"v_permlane32_swap_b32 {v(x)}, {v(t)}")
    a("s_nop 1")
    a(f"v_add_f32 {v(x)}, {v(x)}, {v(t)}")

def round_bf16(a, d, x):
    a(f"v_cvt_pk_bf16_f32 {v(d)}, {v(x)}, {v(x)}")
    a(f"v_lshlrev_b32 {v(d)}, 16, {v(d)}")

def ln_loads(a, t0, sMOD, voff8, shift_col, scale_col):
    G = t0 + 4
    S = t0 + 12
    a(f"s_mov_b32 s90, {scale_col*4}")
    a(f"s_mov_b32 s91, {shift_col*4}")
    a(f"buffer_load_dwordx4 {v(G,4)}, {v(voff8)}, {s(sMOD,4)}, s90 offen")
    a(f"buffer_load_dwordx4 {v(G+4,4)}, {v(voff8)}, {s(sMOD,4)}, s90 offen offset:16")
    a(f"buffer_load_dwordx4 {v(S,4)}, {v(voff8)}, {s(sMOD,4)}, s91 offen")
    a(f"buffer_load_dwordx4 {v(S+4,4)}, {v(voff8)}, {s(sMOD,4)}, s91 offen offset:16")

def ln_row(a, X, t0, sMOD, voff8, shift_col, scale_col, outregs, loads=True):
    G = t0 + 4
    S = t0 + 12
    if loads: ln_loads(a, t0, sMOD, voff8, shift_col, scale_col)
    sm, tt, va = t0, t0 + 1, t0 + 2
    a(f"v_add_f32 {v(sm)}, {v(X)}, {v(X+1)}")
    for i in range(2, 8):
        a(f"v_add_f32 {v(sm)}, {v(sm)}, {v(X+i)}")
    wave_sum(a, sm, tt)
    a(f"v_mul_f32 {v(sm)}, 0x3b000000, {v(sm)}")
    for i in range(8):
        a(f"v_sub_f32 {v(X+i)}, {v(X+i)}, {v(sm)}")
    a(f"v_mul_f32 {v(va)}, {v(X)}, {v(X)}")
    for i in range(1, 8):
        a(f"v_fmac_f32 {v(va)}, {v(X+i)}, {v(X+i)}")
    wave_sum(a, va, tt)
    a(f"v_mov_b32 {v(tt)}, 0x3727c5ac")
    a(f"v_fmac_f32 {v(tt)}, 0x3b000000, {v(va)}")
    a(f"v_rsq_f32 {v(tt)}, {v(tt)}")
    a("s_waitcnt vmcnt(0)" if loads else "s_nop 0")
    for i in range(8):
        a(f"v_mul_f32 {v(X+i)}, {v(X+i)}, {v(tt)}")
    for i in range(8):
        a(f"v_fma_f32 {v(X+i)}, {v(X+i)}, {v(G+i)}, {v(S+i)}")
    for i in range(4):
        a(f"v_cvt_pk_bf16_f32 {v(outregs+i)}, {v(X+2*i)}, {v(X+2*i+1)}")

def unpack8(a, src, dst):
    for i in range(4):
        a(f"v_lshlrev_b32 {v(dst+2*i)}, 16, {v(src+i)}")
        a(f"v_and_b32 {v(dst+2*i+1)}, 0xffff0000, {v(src+i)}")
```

```python
from common import *

class LdsAddr:
    def __init__(self, a, regs, nseg, alloc):
        self.base = regs
        self.seg = {0: regs}
        for sg in range(1, nseg):
            rr = []
            for r in regs:
                n = alloc()
                a(f"v_add_u32 {v(n)}, {hex(sg*65536)}, {v(r)}")
                rr.append(n)
            self.seg[sg] = rr
    def get(self, idx, off):
        sg = off // 65536
        return self.seg[sg][idx], off % 65536

def lane_decomp(a, L, tmp):
    a(f"v_and_b32 {v(tmp)}, 31, {v(L)}")
    a(f"v_lshrrev_b32 {v(tmp+1)}, 5, {v(L)}")
    a(f"v_bfe_u32 {v(tmp+2)}, {v(L)}, 2, 2")
    a(f"v_and_b32 {v(tmp+3)}, 3, {v(L)}")
    a(f"v_bfe_u32 {v(tmp+4)}, {v(L)}, 4, 1")

def xfrag_addrs(a, T, dst, rowbytes, nchunkbits_shift, sbase=None):
    r, h = T, T+1
    a(f"v_bfe_u32 {v(dst)}, {v(r)}, 1, 3")
    a(f"v_xor_b32 {v(dst)}, {v(dst)}, {v(h)}")
    a(f"v_lshlrev_b32 {v(dst)}, 4, {v(dst)}")
    a(f"v_lshl_add_u32 {v(dst)}, {v(r)}, 7, {v(dst)}")
    if sbase is not None:
        a(f"v_add_u32 {v(dst)}, {sbase}, {v(dst)}")
    for sidx in range(1, 4):
        a(f"v_xor_b32 {v(dst+sidx)}, {sidx<<5}, {v(dst)}")

def wfrag_addr(a, T, dst, tmp, RB, perm, nb_sgpr_or_int, const_off):
    h, r4, c, cb = T+1, T+2, T+3, T+4
    a(f"v_lshl_add_u32 {v(dst)}, {v(h)}, {2 if perm else 3}, {v(r4)}")
    a(f"v_mul_u32_u24 {v(dst)}, {RB}, {v(dst)}")
    if RB >= 256:
        a(f"v_xor_b32 {v(tmp)}, {nb_sgpr_or_int}, {v(r4)}")
    else:
        a(f"v_lshrrev_b32 {v(tmp)}, 1, {v(r4)}")
        a(f"v_xor_b32 {v(tmp)}, {nb_sgpr_or_int}, {v(tmp)}")
    a(f"v_lshl_add_u32 {v(dst)}, {v(tmp)}, 6, {v(dst)}")
    a(f"v_lshl_add_u32 {v(dst)}, {v(cb)}, 5, {v(dst)}")
    a(f"v_lshl_add_u32 {v(dst)}, {v(c)}, 3, {v(dst)}")
    if const_off:
        a(f"v_add_u32 {v(dst)}, {hex(const_off)}, {v(dst)}")

def xdma_voff(a, L, sW, dst, tmp, lda):
    a(f"v_lshrrev_b32 {v(dst)}, 3, {v(L)}")
    a(f"s_lshl_b32 s90, {sW}, 3")
    a(f"v_add_u32 {v(dst)}, s90, {v(dst)}")
    a(f"v_bfe_u32 {v(tmp)}, {v(dst)}, 1, 3")
    a(f"s_mov_b32 s90, {lda}")
    a(f"v_mul_lo_u32 {v(dst)}, {v(dst)}, s90")
    a(f"v_and_b32 {v(tmp+1)}, 7, {v(L)}")
    a(f"v_xor_b32 {v(tmp)}, {v(tmp)}, {v(tmp+1)}")
    a(f"v_lshl_add_u32 {v(dst)}, {v(tmp)}, 4, {v(dst)}")

def wdma_voff(a, L, sW, dst, tmp, ldb, BNs):
    LPR = BNs // 8
    RPI = 64 // LPR
    lg = LPR.bit_length() - 1
    a(f"v_lshrrev_b32 {v(dst)}, {lg}, {v(L)}")
    a(f"s_mul_i32 s90, {sW}, {RPI}")
    a(f"v_add_u32 {v(dst)}, s90, {v(dst)}")
    if BNs >= 128:
        a(f"v_and_b32 {v(tmp)}, 3, {v(dst)}")
    else:
        a(f"v_bfe_u32 {v(tmp)}, {v(dst)}, 1, 1")
    a(f"v_lshlrev_b32 {v(tmp)}, 2, {v(tmp)}")
    a(f"s_mov_b32 s90, {ldb}")
    a(f"v_mul_lo_u32 {v(dst)}, {v(dst)}, s90")
    a(f"v_and_b32 {v(tmp+1)}, {LPR-1}, {v(L)}")
    a(f"v_xor_b32 {v(tmp)}, {v(tmp)}, {v(tmp+1)}")
    a(f"v_lshl_add_u32 {v(dst)}, {v(tmp)}, 4, {v(dst)}")
    return RPI

MF = "v_mfma_f32_32x32x16_bf16"

import os
GDBG = os.environ.get('GDBG', '')
def gstamp(a, name, idx):
    if GDBG != name: return
    a("s_memtime s[80:81]")
    a("s_waitcnt lgkmcnt(0)")
    a(f"v_writelane_b32 v3, s80, {idx}")
def gdump(a, name):
    if GDBG != name: return
    gstamp(a, name, 62)
    a("s_waitcnt vmcnt(0)")
    gstamp(a, name, 63)
    make_srd(a, 84, 46, 0x8000000, 256*8*512)
    a("s_lshl_b32 s50, s2, 12")
    a("s_lshl_b32 s51, s28, 9")
    a("s_add_u32 s50, s50, s51")
    a("v_lshlrev_b32 v13, 2, v1")
    a("buffer_store_dword v3, v13, s[84:87], s50 offen")

def gemm_A(a, name, P):
    NW, WM, WN, TM, TN, NST, KT = (P[k] for k in ('NW','WM','WN','TM','TN','NST','KT'))
    lda, ldb, nsub, perm = P['lda'], P['ldb'], P['nsub'], P['perm']
    BM = WM*TM*32
    BN = WN*TN*32
    BNs = BN // nsub
    TNs = TN // nsub
    RB = BNs*2
    XB = BM*128
    WB = BNs*128
    STG = XB + nsub*WB
    kernel_begin(a, name)
    end = a.newlabel("end")
    a(f"s_cmp_ge_u32 s2, {P['nwg']}")
    a(f"s_cbranch_scc1 {end}")
    gstamp(a, name, 0)
    P['setup'](a)
    a("v_and_b32 v1, 63, v0")
    a("v_lshrrev_b32 v2, 6, v0")
    a("s_nop 0")
    a("v_readfirstlane_b32 s28, v2")
    a("s_nop 3")
    a(f"s_and_b32 s29, s28, {WN-1}")
    a(f"s_lshr_b32 s30, s28, {WN.bit_length()-1}")
    nreg = [16]
    def alloc(n=1, al=1):
        nreg[0] = (nreg[0] + al - 1)//al*al
        r = nreg[0]; nreg[0] += n
        return r
    T = 4
    lane_decomp(a, 1, T)
    vXd = alloc(); vWd = alloc()
    xdma_voff(a, 1, "s28", vXd, 10, lda)
    RPI = wdma_voff(a, 1, "s28", vWd, 10, ldb, BNs)
    xa = alloc(4)
    a(f"s_mul_i32 s31, s30, {TM*32*128}")
    xfrag_addrs(a, T, xa, 128, 0, "s31")
    wa = []
    for sub in range(nsub):
        for t in range(TNs):
            r = alloc()
            a(f"s_mul_i32 s31, s29, {TNs}")
            a(f"s_add_u32 s31, s31, {t}")
            a(f"s_and_b32 s32, s31, 3")
            a(f"s_lshr_b32 s31, s31, 2")
            a(f"s_lshl_b32 s31, s31, 8")
            wfrag_addr(a, T, r, 10, RB, perm, "s32", XB + sub*WB)
            a(f"v_add_u32 {v(r)}, s31, {v(r)}")
            wa.append(r)
    nseg = (NST*STG + 65535)//65536
    XA = LdsAddr(a, [xa+i for i in range(4)], nseg, alloc)
    WA = LdsAddr(a, wa, nseg, alloc)
    fr = [alloc((TM+TN)*4, 4) for _ in range(2)]
    acc = alloc(TM*TN*16, 4)
    a(f"s_lshl_b32 s33, s28, 10")
    nX = BM//8//NW
    nWl = BNs//8//NW
    L = nX + nsub*nWl
    def dma(t):
        st = t % NST
        out = []
        for jj in range(nX):
            out.append([f"s_add_u32 m0, s33, {st*STG + jj*NW*1024}",
                        f"s_add_u32 s34, s24, {t*128 + jj*8*NW*lda}",
                        f"buffer_load_dwordx4 {v(vXd)}, s[4:7], s34 offen lds"])
        for sub in range(nsub):
            for jj in range(nWl):
                out.append([f"s_add_u32 m0, s33, {st*STG + XB + sub*WB + jj*NW*1024}",
                            f"s_add_u32 s34, s{25+sub}, {t*64*ldb + jj*NW*RPI*ldb}",
                            f"buffer_load_dwordx4 {v(vWd)}, {s(8+4*sub,4)}, s34 offen lds"])
        return out
    def reads(t, ks, f):
        st = t % NST
        for mb in range(TM):
            r, o = XA.get(ks, st*STG + mb*4096)
            a(f"ds_read_b128 {v(f+4*mb,4)}, {v(r)} offset:{o}")
        for nb in range(TN):
            for half in range(2):
                off = st*STG + 16*ks*RB + half*(8 if perm else 4)*RB
                r, o = WA.get(nb, off)
                a(f"ds_read_b64_tr_b16 {v(f+4*TM+4*nb+2*half,2)}, {v(r)} offset:{o}")
    if 'pre' in P: P['pre'](a, dict(alloc=alloc))
    for t in range(min(NST, KT)):
        for g in dma(t):
            for i in g: a(i)
    gstamp(a, name, 1)
    extra = 0
    if 'mid' in P: extra = P['mid'](a, dict(alloc=alloc, L=L, NST=NST))
    gstamp(a, name, 2)
    a(f"s_waitcnt vmcnt({L*(min(NST, KT)-1) + extra})")
    a("s_barrier")
    reads(0, 0, fr[0])
    d = []
    for t in range(KT):
        for ks in range(4):
            a("s_waitcnt lgkmcnt(0)")
            if ks < 3:
                reads(t, ks+1, fr[(ks+1)&1])
            elif t + 1 < KT:
                for g in d:
                    for i in g: a(i)
                a(f"s_waitcnt vmcnt({L*min(NST-2, KT-2-t)})")
                a("s_barrier")
                gstamp(a, name, 3+t)
                reads(t+1, 0, fr[0])
                d = dma(t+NST) if t+NST < KT else []
            f = fr[ks&1]
            for nb in range(TN):
                for mb in range(TM):
                    c = acc + (nb*TM+mb)*16
                    src = "0" if (t == 0 and ks == 0) else v(c,16)
                    a(f"{MF} {v(c,16)}, {v(f+4*TM+4*nb,4)}, {v(f+4*mb,4)}, {src}")
                    if d:
                        for i in d.pop(0): a(i)
    a("s_nop 15")
    gstamp(a, name, 61)
    P['epilogue'](a, dict(acc=acc, TM=TM, TN=TN, T=T, alloc=alloc, TNs=TNs, fr=fr))
    gdump(a, name)
    a.label(end)
    a("s_endpgm")
    return name, nreg[0], (P['nwg'], NW*64, NST*STG)
```

```python
from common import *
from gemm import *

def store_bf16_perm(a, c, tmp, voff, srd, soff, imm):
    for g in range(2):
        t = tmp + 4*g
        for i in range(4):
            a(f"v_cvt_pk_bf16_f32 {v(t+i)}, {v(c+8*g+2*i)}, {v(c+8*g+2*i+1)}")
        a(f"buffer_store_dwordx4 {v(t,4)}, {v(voff)}, {s(srd,4)}, {soff} offen offset:{imm+32*g}")

def gen_kv(a):
    def setup(a):
        load_ptr(a, 40, 'ckv'); load_ptr(a, 42, 'wuk'); load_ptr(a, 44, 'wuv'); load_ptr(a, 46, 'ws'); load_ptr(a, 48, 'x')
        a("s_and_b32 s35, s2, 7")
        a("s_lshr_b32 s36, s2, 3")
        a("s_and_b32 s37, s36, 1")
        a("s_lshl_b32 s38, s35, 1")
        a("s_add_u32 s37, s37, s38")
        a("s_bfe_u32 s38, s36, 0x10001")
        a("s_lshr_b32 s39, s36, 2")
        a("s_waitcnt lgkmcnt(0)")
        make_srd(a, 4, 40, 0, 2048*1024)
        a("s_cmp_eq_u32 s38, 1")
        a("s_cselect_b32 s50, s44, s42")
        a("s_cselect_b32 s51, s45, s43")
        make_srd(a, 8, 50, 0, 512*8192)
        a("s_lshl_b32 s24, s39, 18")
        a("s_lshl_b32 s25, s37, 9")
        a(f"s_mul_i32 s52, s38, {WS_V-WS_K}")
        a("s_add_u32 s52, s46, s52")
        a("s_addc_u32 s53, s47, 0")
        make_srd(a, 16, 52, WS_K, 32*2048*256)
        make_srd(a, 56, 48, 0, 2048*1024)
        make_srd(a, 60, 46, WS_MOD, 12288)
        make_srd(a, 64, 46, WS_H, 2048*1024)
    st = {}
    def pre(a, c):
        t = c['alloc'](40, 4); st['t'] = t
        a("s_lshl_b32 s68, s2, 3")
        a("s_add_u32 s68, s68, s28")
        a("s_lshl_b32 s68, s68, 10")
        a(f"v_lshlrev_b32 {v(t)}, 4, v1")
        a(f"v_lshlrev_b32 {v(t+1)}, 5, v1")
        a(f"buffer_load_dwordx4 {v(t+4,4)}, {v(t)}, s[56:59], s68 offen")
        ln_loads(a, t+16, 60, t+1, 0, 512)
    def mid(a, c):
        t = st['t']
        a(f"s_waitcnt vmcnt({c['L']*c['NST']})")
        unpack8(a, t+4, t+8)
        ln_row(a, t+8, t+16, 60, t+1, 0, 512, t+4, loads=False)
        a(f"buffer_store_dwordx4 {v(t+4,4)}, {v(t)}, s[64:67], s68 offen")
        return 1
    def epi(a, c):
        acc, TM, TN, T = c['acc'], c['TM'], c['TN'], c['T']
        vo = c['alloc'](); tmp = c['fr'][0]
        a(f"v_lshlrev_b32 {v(vo)}, 8, {v(T)}")
        a(f"v_lshl_add_u32 {v(vo)}, {v(T+1)}, 4, {v(vo)}")
        a("s_lshl_b32 s34, s39, 16")
        a("s_lshl_b32 s54, s30, 15")
        a("s_add_u32 s34, s34, s54")
        a("s_lshl_b32 s54, s37, 1")
        a("s_lshr_b32 s55, s29, 1")
        a("s_add_u32 s54, s54, s55")
        a("s_lshl_b32 s54, s54, 19")
        a("s_add_u32 s34, s34, s54")
        a("s_and_b32 s54, s29, 1")
        a("s_lshl_b32 s54, s54, 7")
        a("s_add_u32 s34, s34, s54")
        k = 0
        for mb in range(TM):
            a(f"s_add_u32 s54, s34, {mb*32*256}")
            for nb in range(TN):
                store_bf16_perm(a, acc+(nb*TM+mb)*16, tmp + 8*(k % 3), vo, 16, "s54", nb*64)
                k += 1
    P = dict(NW=8, WM=2, WN=4, TM=4, TN=2, NST=2, KT=8, lda=1024, ldb=8192, nsub=1, perm=False, nwg=256,
             setup=setup, epilogue=epi, mid=mid, pre=pre)
    return gemm_A(a, "k_kv_kernel", P)

def gen_oproj(a):
    def setup(a):
        load_ptr(a, 40, 'wo'); load_ptr(a, 46, 'ws')
        a("s_and_b32 s35, s2, 7")
        a("s_lshr_b32 s36, s2, 3")
        a("s_lshr_b32 s37, s35, 1")
        a("s_and_b32 s38, s35, 1")
        a("s_lshl_b32 s38, s38, 3")
        a("s_lshr_b32 s39, s36, 2")
        a("s_add_u32 s39, s39, s38")
        a("s_and_b32 s38, s36, 3")
        a("s_waitcnt lgkmcnt(0)")
        make_srd(a, 4, 46, WS_CTX, 2048*8192)
        make_srd(a, 8, 40, 0, 4096*1024)
        make_srd(a, 16, 46, WS_PART, 4*2048*2048)
        a("s_lshl_b32 s24, s39, 20")
        a("s_lshl_b32 s54, s37, 11")
        a("s_add_u32 s24, s24, s54")
        a("s_lshl_b32 s25, s37, 20")
        a("s_lshl_b32 s54, s38, 8")
        a("s_add_u32 s25, s25, s54")
    def epi(a, c):
        acc, TM, TN, T = c['acc'], c['TM'], c['TN'], c['T']
        vo = c['alloc']()
        a(f"v_lshlrev_b32 {v(vo)}, 11, {v(T)}")
        a(f"v_lshl_add_u32 {v(vo)}, {v(T+1)}, 4, {v(vo)}")
        a("s_lshl_b32 s34, s37, 22")
        a("s_lshl_b32 s54, s39, 18")
        a("s_add_u32 s34, s34, s54")
        a(f"s_mul_i32 s54, s30, {TM*32*2048}")
        a("s_add_u32 s34, s34, s54")
        a("s_lshl_b32 s54, s38, 9")
        a("s_add_u32 s34, s34, s54")
        a(f"s_mul_i32 s54, s29, {TN*32*4}")
        a("s_add_u32 s34, s34, s54")
        for mb in range(TM):
            a(f"s_add_u32 s54, s34, {mb*32*2048}")
            for nb in range(TN):
                for q in range(4):
                    a(f"buffer_store_dwordx4 {v(acc+(nb*TM+mb)*16+4*q,4)}, {v(vo)}, s[16:19], s54 offen offset:{nb*128+q*32}")
    P = dict(NW=4, WM=2, WN=2, TM=2, TN=2, NST=4, KT=16, lda=8192, ldb=1024, nsub=1, perm=False, nwg=256,
             setup=setup, epilogue=epi)
    return gemm_A(a, "k_oproj_kernel", P)

def gen_gu(a):
    def setup(a):
        load_ptr(a, 40, 'wg'); load_ptr(a, 42, 'wu'); load_ptr(a, 46, 'ws')
        a("s_and_b32 s35, s2, 7")
        a("s_lshr_b32 s36, s2, 3")
        a("s_mul_i32 s37, s36, 37")
        a("s_lshr_b32 s37, s37, 8")
        a("s_mul_i32 s38, s37, 7")
        a("s_sub_u32 s38, s36, s38")
        a("s_lshr_b32 s39, s35, 1")
        a("s_lshl_b32 s39, s39, 2")
        a("s_add_u32 s39, s39, s37")
        a("s_and_b32 s54, s35, 1")
        a("s_mul_i32 s54, s54, 7")
        a("s_add_u32 s38, s38, s54")
        a("s_waitcnt lgkmcnt(0)")
        make_srd(a, 4, 46, WS_H2, 2048*1024)
        make_srd(a, 8, 40, 0, 512*3584)
        make_srd(a, 12, 42, 0, 512*3584)
        make_srd(a, 16, 46, WS_ACT, 2048*3584)
        a("s_lshl_b32 s24, s39, 17")
        a("s_lshl_b32 s25, s38, 8")
        a("s_mov_b32 s26, s25")
    def epi(a, c):
        acc, TM, TN, T = c['acc'], c['TM'], c['TN'], c['T']
        vo = c['alloc'](); tmp = c['fr'][0]
        a("s_movk_i32 s54, 3584")
        a(f"v_mul_lo_u32 {v(vo)}, {v(T)}, s54")
        a(f"v_lshl_add_u32 {v(vo)}, {v(T+1)}, 4, {v(vo)}")
        a(f"s_mul_i32 s34, s39, {128*3584}")
        a(f"s_mul_i32 s54, s30, {TM*32*3584}")
        a("s_add_u32 s34, s34, s54")
        a("s_lshl_b32 s54, s38, 8")
        a("s_add_u32 s34, s34, s54")
        a("s_lshl_b32 s54, s29, 6")
        a("s_add_u32 s34, s34, s54")
        for mb in range(TM):
            g = acc + mb*16
            u = acc + (TM+mb)*16
            for i in range(16):
                a(f"v_max_f32 {v(g+i)}, 0, {v(g+i)}")
                a(f"v_mul_f32 {v(g+i)}, {v(g+i)}, {v(u+i)}")
            a(f"s_add_u32 s54, s34, {mb*32*3584}")
            store_bf16_perm(a, g, tmp + 8*mb, vo, 16, "s54", 0)
    P = dict(NW=8, WM=2, WN=4, TM=2, TN=2, NST=3, KT=8, lda=1024, ldb=3584, nsub=2, perm=False, nwg=224,
             setup=setup, epilogue=epi)
    return gemm_A(a, "k_gu_kernel", P)

def gen_down(a):
    name = "k_down_kernel"
    NST, KT = 2, 7
    lda, ldb = 3584, 1024
    kernel_begin(a, name)
    end = a.newlabel("end")
    a("s_cmp_ge_u32 s2, 256")
    a(f"s_cbranch_scc1 {end}")
    load_ptr(a, 40, 'wd'); load_ptr(a, 42, 'out'); load_ptr(a, 46, 'ws')
    a("s_and_b32 s35, s2, 7")
    a("s_lshr_b32 s36, s2, 3")
    a("s_lshl_b32 s39, s35, 2")
    a("s_lshr_b32 s37, s36, 3")
    a("s_add_u32 s39, s39, s37")
    a("s_and_b32 s38, s36, 7")
    a("v_and_b32 v1, 63, v0")
    a("v_lshrrev_b32 v2, 6, v0")
    a("s_nop 0")
    a("v_readfirstlane_b32 s28, v2")
    a("s_waitcnt lgkmcnt(0)")
    make_srd(a, 4, 46, WS_ACT, 2048*3584)
    make_srd(a, 8, 40, 0, 1792*1024)
    make_srd(a, 16, 42, 0, 2048*1024)
    make_srd(a, 12, 46, WS_X1, 2048*2048)
    make_srd(a, 20, 46, WS_MOD, 12288)
    T = 4
    lane_decomp(a, 1, T)
    vXd, vWd = 16, 17
    a("s_mov_b32 s29, 0")
    xdma_voff(a, 1, "s29", vXd, 10, lda)
    a(f"v_xor_b32 v18, 64, {v(vXd)}")
    wdma_voff(a, 1, "s29", vWd, 10, ldb, 64)
    a(f"s_mul_i32 s24, s39, {64*lda}")
    a("s_lshl_b32 s54, s28, 7")
    a("s_add_u32 s24, s24, s54")
    a("s_lshl_b32 s25, s28, 16")
    a("s_lshl_b32 s54, s38, 7")
    a("s_add_u32 s25, s25, s54")
    a("s_lshl_b32 s33, s28, 15")
    xa = 20
    xfrag_addrs(a, T, xa, 128, 0, "s33")
    wa = [24, 25]
    for nb in range(2):
        wfrag_addr(a, T, wa[nb], 10, 128, True, nb, 8192)
        a(f"v_add_u32 {v(wa[nb])}, s33, {v(wa[nb])}")
    fr = [28, 44]
    acc = 60
    def dma(t):
        st = t % NST
        out = []
        for j in range(8):
            out.append([f"s_add_u32 m0, s33, {st*16384 + j*1024}",
                        f"s_add_u32 s34, s24, {t*512 + j*8*lda}",
                        f"buffer_load_dwordx4 {v(vXd if j%2==0 else 18)}, s[4:7], s34 offen lds"])
        for j in range(8):
            out.append([f"s_add_u32 m0, s33, {st*16384 + 8192 + j*1024}",
                        f"s_add_u32 s34, s25, {t*256*ldb + j*8*ldb}",
                        f"buffer_load_dwordx4 {v(vWd)}, s[8:11], s34 offen lds"])
        return out
    def reads(t, ks, f):
        st = t % NST
        for mb in range(2):
            a(f"ds_read_b128 {v(f+4*mb,4)}, {v(xa+ks)} offset:{st*16384+mb*4096}")
        for nb in range(2):
            for half in range(2):
                a(f"ds_read_b64_tr_b16 {v(f+8+4*nb+2*half,2)}, {v(wa[nb])} offset:{st*16384+16*ks*128+half*8*128}")
    for t in range(2):
        for g in dma(t):
            for i in g: a(i)
    for t in range(KT):
        a(f"s_waitcnt vmcnt({16 if t < KT-1 else 0})")
        reads(t, 0, fr[0])
        for ks in range(4):
            a("s_waitcnt lgkmcnt(0)")
            if ks < 3: reads(t, ks+1, fr[(ks+1)&1])
            f = fr[ks&1]
            for nb in range(2):
                for mb in range(2):
                    c = acc + (nb*2+mb)*16
                    src = "0" if (t == 0 and ks == 0) else v(c,16)
                    a(f"{MF} {v(c,16)}, {v(f+8+4*nb,4)}, {v(f+4*mb,4)}, {src}")
        if t+2 < KT:
            for g in dma(t+2):
                for i in g: a(i)
    a("s_nop 15")
    a("s_barrier")
    a("v_lshlrev_b32 v26, 4, v1")
    a("s_lshl_b32 s54, s28, 14")
    a("v_add_u32 v27, s54, v26")
    for tl in range(4):
        for q in range(4):
            a(f"ds_write_b128 v27, {v(acc+tl*16+4*q,4)} offset:{tl*4096+q*1024}")
    a("s_waitcnt lgkmcnt(0)")
    a("s_barrier")
    a("s_lshl_b32 s54, s28, 12")
    a("v_add_u32 v27, s54, v26")
    a("s_lshr_b32 s29, s28, 1")
    a("s_and_b32 s30, s28, 1")
    a("s_lshl_b32 s54, s39, 6")
    a("s_lshl_b32 s55, s30, 5")
    a("s_add_u32 s54, s54, s55")
    a("s_lshl_b32 s55, s38, 6")
    a("s_lshl_b32 s56, s29, 5")
    a("s_add_u32 s55, s55, s56")
    a("s_lshl_b32 s56, s54, 11")
    a("s_lshl_b32 s57, s55, 2")
    a("s_add_u32 s56, s56, s57")
    a("s_add_u32 s57, s57, 10240")
    a("s_lshr_b32 s58, s56, 1")
    a(f"v_lshlrev_b32 v10, 11, {v(T)}")
    a(f"v_lshl_add_u32 v10, {v(T+1)}, 4, v10")
    a(f"v_lshlrev_b32 v11, 4, {v(T+1)}")
    a("v_lshrrev_b32 v12, 1, v10")
    for q in range(4):
        a(f"buffer_load_dwordx4 {v(28+4*q,4)}, v10, s[12:15], s56 offen offset:{q*32}")
        a(f"buffer_load_dwordx4 {v(44+4*q,4)}, v11, s[20:23], s57 offen offset:{q*32}")
    for w in range(4):
        for q in range(4):
            a(f"ds_read_b128 {v(acc+w*16+4*q,4)}, v27 offset:{w*16384+q*1024}")
        if w == 2: a("s_waitcnt lgkmcnt(0)")
    a("s_waitcnt lgkmcnt(0)")
    for w in range(1, 4):
        for i in range(16):
            a(f"v_add_f32 {v(acc+i)}, {v(acc+i)}, {v(acc+16*w+i)}")
    a("s_waitcnt vmcnt(0)")
    for i in range(16):
        a(f"v_fmac_f32 {v(28+i)}, {v(acc+i)}, {v(44+i)}")
    for q in range(4):
        a(f"v_cvt_pk_bf16_f32 {v(acc+16+2*q)}, {v(28+4*q)}, {v(28+4*q+1)}")
        a(f"v_cvt_pk_bf16_f32 {v(acc+16+2*q+1)}, {v(28+4*q+2)}, {v(28+4*q+3)}")
        a(f"buffer_store_dwordx2 {v(acc+16+2*q,2)}, v12, s[16:19], s58 offen offset:{q*16}")
    a.label(end)
    a("s_endpgm")
    return name, acc+64, (256, 256, 131072)
```

```python
import sys
from common import *
from small import *
from kernels import *
from attn3 import *
hdr = open('adaLN_cond__compressed_kv_cla__glu_gated_reglu__prompt.s.ref').read().split('; Override launch')[0]
import os
DBG = bool(os.environ.get('DBG'))
a = Asm()
ks = []
for g in (gen_kv, lambda a: gen_attn(a, dbg=DBG), *((gen_oproj4, lambda a: gen_ln2b(a, 4)) if not os.environ.get('SP8') else (gen_oproj, gen_ln2b)), gen_gu, gen_down):
    ks.append(g(a))
out = hdr
for name, nv, (gx, bx, lds) in ks:
    out += f"; @launch kernel={name} grid=({gx},1,1) block=({bx},1,1) lds={lds}\n"
out += '.amdgcn_target "amdgcn-amd-amdhsa--gfx950"\n.text\n'
out += a.text()
out += '.section .rodata,"a"\n'
for name, nv, _ in ks:
    out += kernel_desc(name, nv)
    print(name, nv, _)
open(sys.argv[1] if len(sys.argv) > 1 else 'adaLN_cond__compressed_kv_cla__glu_gated_reglu__prompt.s', 'w').write(out)
```

```python
from common import *
from gemm import *
from kernels import store_bf16_perm
import math, struct

def f2u(x): return struct.unpack('<I', struct.pack('<f', x))[0]
CSCF = math.log2(math.e) / math.sqrt(128.0)
CSC = f2u(CSCF)
NEG = f2u(-1e30)
THR = f2u(8.0)

import os
PM = int(os.environ.get('PM', 1)); PS = int(os.environ.get('PS', 0))
def gen_attn(a, D=6, dbg=False):
    name = "k_attn_kernel"
    def stamp(k, adj=0):
        if not dbg: return
        a("s_memtime s[80:81]")
        a("s_mul_i32 s82, s54, 3")
        a(f"s_add_i32 m0, s82, {k%3 - 3*adj}")
        a("s_waitcnt lgkmcnt(0)")
        a(f"v_writelane_b32 v{(3,9)[k//3]}, s80, m0")
    def stampx(idx):
        if not dbg: return
        a("s_memtime s[80:81]")
        a("s_waitcnt lgkmcnt(0)")
        a(f"v_writelane_b32 v3, s80, {idx}")
    T = 4
    vXd, vWd, vKd, vVd = 16, 17, 18, 19
    KA_, VA_ = 20, 28
    vM, vL, vMC, vD, vMX, vT, vAL, vR4 = 32, 34, 36, 38, 39, 40, 42, 44
    QF, S, P, O, FR, NM = 48, 80, 112, 128, 192, 240
    XA_ = [S, S+8, S+16]
    MS = [66, 68, 72, 74, 76, 78, 84, 86, 88, 92, 94, 96, 98, 100, 40, 42]
    QS = 131072
    QST = 49152
    kernel_begin(a, name)
    end = a.newlabel("end")
    a("s_cmp_ge_u32 s2, 256")
    a(f"s_cbranch_scc1 {end}")
    stampx(51)
    load_ptr(a, 40, 'wq'); load_ptr(a, 46, 'ws')
    a("s_and_b32 s35, s2, 7")
    a("s_lshr_b32 s36, s2, 3")
    a("s_and_b32 s37, s36, 3")
    a("s_lshl_b32 s38, s35, 2")
    a("s_add_u32 s37, s37, s38")
    a("s_lshr_b32 s38, s36, 2")
    a("s_sub_u32 s39, 15, s38")
    a("v_and_b32 v1, 63, v0")
    a("v_lshrrev_b32 v2, 6, v0")
    a("s_nop 0")
    a("v_readfirstlane_b32 s28, v2")
    a("s_nop 2")
    xdma_voff(a, 1, "s28", vXd, 10, 1024)
    wdma_voff(a, 1, "s28", vWd, 10, 8192, 128)
    a("s_lshl_b32 s33, s28, 10")
    a("s_lshl_b32 s24, s38, 17")
    a("s_lshl_b32 s25, s39, 17")
    a("s_lshl_b32 s26, s37, 8")
    a("s_waitcnt lgkmcnt(0)")
    make_srd(a, 4, 46, WS_H, 2048*1024)
    make_srd(a, 8, 40, 0, 512*8192)
    def qdma(t):
        st = (t % 3)*QST
        out = []
        for jj in range(4):
            out.append([f"s_add_u32 m0, s33, {st + jj*8192}",
                        f"s_add_u32 s34, s{24 + (jj>>1)}, {t*128 + (jj&1)*64*1024}",
                        f"buffer_load_dwordx4 {v(vXd)}, s[4:7], s34 offen lds"])
        for jj in range(2):
            out.append([f"s_add_u32 m0, s33, {st + 32768 + jj*8192}",
                        f"s_add_u32 s34, s26, {t*64*8192 + jj*32*8192}",
                        f"buffer_load_dwordx4 {v(vWd)}, s[8:11], s34 offen lds"])
        return out
    for g in qdma(0):
        for i in g: a(i)
    a("s_lshr_b32 s29, s28, 2")
    a("s_and_b32 s30, s28, 3")
    a("s_lshl_b32 s50, s37, 19")
    a("s_add_u32 s52, s46, s50")
    a("s_addc_u32 s53, s47, 0")
    make_srd(a, 12, 52, WS_K, 2048*256)
    make_srd(a, 16, 52, WS_V, 2048*256)
    make_srd(a, 20, 46, WS_CTX, 2048*8192)
    lane_decomp(a, 1, T)
    wdma_voff(a, 1, "s30", vVd, 10, 256, 128)
    a(f"v_lshrrev_b32 {v(vKd)}, 4, v1")
    a("s_lshl_b32 s50, s30, 2")
    a(f"v_add_u32 {v(vKd)}, s50, {v(vKd)}")
    a(f"v_xor_b32 v10, {v(vKd)}, v1")
    a("v_and_b32 v10, 15, v10")
    a(f"v_lshlrev_b32 {v(vKd)}, 8, {v(vKd)}")
    a(f"v_lshl_add_u32 {v(vKd)}, v10, 4, {v(vKd)}")
    for r_ in (vKd, vVd):
        a(f"v_bfe_u32 v10, {v(r_)}, 5, 3")
        a(f"v_lshrrev_b32 v11, 8, {v(r_)}")
        a(f"v_and_b32 {v(r_)}, 16, {v(r_)}")
        a(f"v_lshl_add_u32 {v(r_)}, v10, 10, {v(r_)}")
        a(f"v_lshl_add_u32 {v(r_)}, v11, 5, {v(r_)}")
    a(f"v_and_b32 v10, 15, {v(T)}")
    a(f"v_xor_b32 v10, v10, {v(T+1)}")
    a("v_lshlrev_b32 v10, 4, v10")
    a(f"v_lshl_add_u32 v10, {v(T)}, 8, v10")
    a("s_lshl_b32 s50, s29, 16")
    a("s_add_u32 s51, s50, 32768")
    a(f"v_add_u32 {v(KA_)}, s51, v10")
    for i in range(1, 8):
        a(f"v_xor_b32 {v(KA_+i)}, {i<<5}, {v(KA_)}")
    for db in range(4):
        wfrag_addr(a, T, VA_+db, 10, 256, True, db, 0)
        a(f"v_add_u32 {v(VA_+db)}, s50, {v(VA_+db)}")
    a("s_lshl_b32 s51, s30, 10")
    a("s_add_u32 s31, s50, s51")
    a("s_add_u32 s32, s31, 32768")
    a("s_lshl_b32 s50, s28, 12")
    xfrag_addrs(a, T, XA_[0], 128, 0, "s50")
    for nb in range(4):
        wfrag_addr(a, T, XA_[0]+4+nb, 10, 256, False, nb, 32768)
    for st in (1, 2):
        for i in range(8):
            a(f"v_add_u32 {v(XA_[st]+i)}, {hex(st*QST)}, {v(XA_[0]+i)}")
    for g in qdma(1):
        for i in g: a(i)
    a("s_lshl_b32 s50, s38, 1")
    a("s_add_u32 s57, s50, 2")
    a("s_sub_u32 s55, 15, s50")
    a("s_cmp_eq_u32 s29, 0")
    a("s_cselect_b32 s57, s57, 99")
    a("s_cselect_b32 s55, 0, s55")
    a("s_cselect_b32 s59, s38, s39")
    a("s_lshl_b32 s59, s59, 7")
    a("s_lshl_b32 s50, s30, 5")
    a("s_add_u32 s59, s59, s50")
    a("s_mov_b32 s54, 0")
    a("s_mov_b32 s64, 0")
    for r in range(16):
        c_ = (r&3) + 8*(r>>2)
        a(f"s_lshl_b32 s{MS[r]}, -1, {c_}")
        a(f"s_lshl_b32 s{MS[r]+1}, -1, {c_+4}")
    a(f"s_mov_b32 s60, {hex(CSC)}")
    a(f"s_mov_b32 s61, {hex(CSC)}")
    a(f"s_mov_b32 s58, {hex(NEG)}")
    a(f"s_mov_b32 s70, {hex(THR)}")
    a(f"v_lshlrev_b32 v10, 2, {v(T+1)}")
    a(f"v_sub_u32 {v(vR4)}, {v(T)}, v10")
    def kdma(stile, sl):
        return [[f"s_add_u32 m0, s32, {jj*4096 + sl*16384}",
                 f"s_add_u32 s34, {stile}, {(jj>>1)*8192 + (jj&1)*512}",
                 f"buffer_load_dwordx4 {v(vKd)}, s[12:15], s34 offen lds"] for jj in range(4)]
    def vdma(stile, sl):
        return [[f"s_add_u32 m0, s31, {jj*4096 + sl*16384}",
                 f"s_add_u32 s34, {stile}, {(jj>>1)*8192 + (jj&1)*512}",
                 f"buffer_load_dwordx4 {v(vVd)}, s[16:19], s34 offen lds"] for jj in range(4)]
    def qreads(t, ks, f):
        xa = XA_[t % 3]
        a(f"ds_read_b128 {v(f,4)}, {v(xa+ks)}")
        for nb in range(4):
            for half in range(2):
                a(f"ds_read_b64_tr_b16 {v(f+4+4*nb+2*half,2)}, {v(xa+4+nb)} offset:{16*ks*256+half*1024}")
    fr = [FR, FR+20]
    a("s_lshl_b32 s27, s55, 14")
    a("s_waitcnt vmcnt(6)")
    a("s_barrier")
    qreads(0, 0, fr[0])
    d = qdma(2)
    for t in range(8):
        for ks in range(4):
            a("s_waitcnt lgkmcnt(0)")
            if ks < 3: qreads(t, ks+1, fr[(ks+1)&1])
            elif t < 7:
                a(f"s_waitcnt vmcnt({6 if t < 6 else 0})")
                a("s_barrier")
                stampx(52+t)
                qreads(t+1, 0, fr[0])
                d = qdma(t+3) if t < 5 else (kdma("s27", 0) if t == 6 else [])
            f = fr[ks&1]
            for nb in range(4):
                c = O + nb*16
                src = "0" if (t == 0 and ks == 0) else v(c,16)
                a(f"{MF} {v(c,16)}, {v(f+4+4*nb,4)}, {v(f,4)}, {src}")
                if d:
                    for i in d.pop(0): a(i)
    a("v_lshlrev_b32 v11, 4, v1")
    a("s_lshl_b32 s50, s30, 13")
    a(f"s_add_u32 s50, s50, {QS}")
    a("v_add_u32 v11, s50, v11")
    a(f"v_mov_b32 {v(vL)}, 0")
    a(f"v_mov_b32 {v(vL+1)}, 0")
    for i in range(16): a(f"v_mov_b32 {v(NM+i)}, 0")
    a("s_mov_b32 s70, s58")
    a("s_mov_b32 s71, 0")
    for i in range(32):
        a(f"v_mul_f32 {v(O+2*i)}, s60, {v(O+2*i)}")
        a(f"v_mul_f32 {v(O+2*i+1)}, s60, {v(O+2*i+1)}")
        a(f"v_cvt_pk_bf16_f32 {v(QF+i)}, {v(O+2*i)}, {v(O+2*i+1)}")
    ng1 = a.newlabel("ng1")
    a("s_cmp_eq_u32 s29, 0")
    a(f"s_cbranch_scc1 {ng1}")
    for i in range(8):
        a(f"ds_write_b128 v11, {v(QF+4*i,4)} offset:{i*1024}")
    a("s_waitcnt vmcnt(0) lgkmcnt(0)")
    a("s_barrier")
    a.label(ng1)
    a("s_waitcnt vmcnt(0) lgkmcnt(0)")
    a("s_barrier")
    vorder = [(ks, db) for ks in range(4) for db in range(4)]
    korder = [(kb, ks) for ks in range(8) for kb in range(2)]
    def fload(i, vs, ksl):
        sl = FR + 4*(i % 12)
        if i < 16:
            ks, db = vorder[i]
            for half in range(2):
                a(f"ds_read_b64_tr_b16 {v(sl+2*half,2)}, {v(VA_+db)} offset:{ks*4096+half*2048+vs*16384}")
        else:
            kb, ks = korder[i-16]
            a(f"ds_read_b128 {v(sl,4)}, {v(KA_+ks)} offset:{kb*8192+ksl*16384}")
    def nin(i): return 2 if i < 16 else 1
    def mfma(i, z=False):
        sl = FR + 4*(i % 12)
        if i < 16:
            ks, db = vorder[i]
            c = O + db*16
            a(f"{MF} {v(c,16)}, {v(sl,4)}, {v(P+4*ks,4)}, {'0' if z else v(c,16)}")
        else:
            kb, ks = korder[i-16]
            c = S + kb*16
            src = v(NM,16) if ks == 0 else v(c,16)
            a(f"{MF} {v(c,16)}, {v(sl,4)}, {v(QF+4*ks,4)}, {src}")
    def tiles():
        a("s_lshl_b32 s27, s55, 14")
        a("s_add_u32 s56, s55, 1")
        a("s_add_u32 s50, s54, 1")
        a("s_cmp_eq_u32 s50, s57")
        a("s_cselect_b32 s56, 0, s56")
        a("s_lshl_b32 s62, s56, 14")
    loop = a.newlabel("loop"); qk = a.newlabel("qk")
    stampx(60)
    tiles()
    for i in range(16, 16+D): fload(i, 0, 0)
    for g in vdma("s27", 0) + kdma("s62", 1):
        for i in g: a(i)
    a(f"s_branch {qk}")
    zblocks = []
    a.label(loop)
    for par in range(2):
        stamp(0)
        d = vdma("s27", par) + kdma("s62", 1-par)
        def step(i, z=False, d=d, par=par):
            cnt = sum(nin(k) for k in range(i+1, min(32, i+D)))
            a(f"s_waitcnt lgkmcnt({cnt})")
            mfma(i, z)
            if i + D < 32: fload(i+D, 1-par, par)
            if i < len(d):
                for x in d[i]: a(x)
        lz = a.newlabel("lz"); lj = a.newlabel("lj")
        a("s_cmp_lg_u32 s64, 0")
        a(f"s_cbranch_scc1 {lz}")
        for i in range(4): step(i)
        a.label(lj)
        for i in range(4, 32):
            if i == 16 and par == 0: a.label(qk)
            step(i)
        def zblock(step=step, lz=lz, lj=lj):
            a.label(lz)
            for i in range(4): step(i, True)
            a("s_mov_b32 s64, 0")
            a(f"s_branch {lj}")
        zblocks.append(zblock)
        stamp(1)
        a("s_lshl_b32 s50, s55, 6")
        a("s_nop 5")
        a("s_waitcnt vmcnt(4)")
        a("s_barrier")
        stamp(3)
        nofin = a.newlabel("nofin")
        a("s_cmp_lg_u32 s54, s57")
        a(f"s_cbranch_scc1 {nofin}")
        a(f"v_add_f32 {v(vL)}, {v(vL)}, {v(vL+1)}")
        a(f"v_mov_b32 {v(vT)}, {v(vL)}")
        a("s_nop 1")
        a(f"v_permlane32_swap_b32 {v(vL)}, {v(vT)}")
        a("s_nop 1")
        a(f"v_add_f32 {v(vL)}, {v(vL)}, {v(vT)}")
        a(f"v_rcp_f32 {v(vAL)}, {v(vL)}")
        a("s_lshl_b32 s51, s59, 13")
        a("s_lshl_b32 s63, s26, 5")
        a("s_add_u32 s51, s51, s63")
        a("s_add_u32 s63, s51, 4096")
        a(f"v_lshlrev_b32 v13, 5, {v(T)}")
        a(f"v_lshl_add_u32 v13, {v(T+1)}, 4, v13")
        for db in range(4):
            for i in range(16):
                a(f"v_mul_f32 {v(O+16*db+i)}, {v(O+16*db+i)}, {v(vAL)}")
            store_bf16_perm(a, O+16*db, FR+8*db, 13, 20, "s51" if db < 2 else "s63", (db&1)*2048, gs=1024)
        a("s_mov_b32 s70, s58")
        a("s_mov_b32 s71, 0")
        a("s_lshl_b32 s59, s39, 7")
        a("s_lshl_b32 s51, s30, 5")
        a("s_add_u32 s59, s59, s51")
        a.label(nofin)
        nomask = a.newlabel("nomask")
        a("s_sub_i32 s50, s59, s50")
        a("s_cmp_ge_i32 s50, 63")
        a(f"s_cbranch_scc1 {nomask}")
        a(f"v_mov_b32 {v(vT)}, s58")
        for kb in range(2):
            nx = a.newlabel("nx"); fu = a.newlabel("fu")
            if kb == 0:
                a("s_cmp_gt_i32 s50, 0")
                a(f"s_cbranch_scc1 {nx}")
            a(f"s_cmp_lt_i32 s50, {32*kb}")
            a(f"s_cbranch_scc1 {fu}")
            for r in range(16):
                a(f"v_cndmask_b32 {v(S+16*kb+r)}, {v(vT)}, {v(S+16*kb+r)}, {s(MS[r],2)}")
            a(f"s_branch {nx}")
            a.label(fu)
            for r in range(16):
                a(f"v_mov_b32 {v(S+16*kb+r)}, s58")
            a.label(nx)
        a.label(nomask)
        stamp(2)
        a(f"v_max3_f32 {v(vMX)}, {v(S)}, {v(S+1)}, {v(S+2)}")
        a(f"v_max3_f32 {v(vT)}, {v(S+3)}, {v(S+4)}, {v(S+5)}")
        for i in range(6, 30, 4):
            a(f"v_max3_f32 {v(vMX)}, {v(vMX)}, {v(S+i)}, {v(S+i+1)}")
            a(f"v_max3_f32 {v(vT)}, {v(vT)}, {v(S+i+2)}, {v(S+i+3)}")
        a(f"v_max3_f32 {v(vMX)}, {v(vMX)}, {v(S+30)}, {v(S+31)}")
        a(f"v_max_f32 {v(vMX)}, {v(vMX)}, {v(vT)}")
        a(f"v_cmp_lt_f32 vcc, s70, {v(vMX)}")
        nores = a.newlabel("nores")
        a(f"s_cbranch_vccz {nores}")
        a(f"v_mov_b32 {v(vT)}, {v(vMX)}")
        a("s_min_i32 s51, s70, 0")
        a("s_nop 0")
        a(f"v_permlane32_swap_b32 {v(vMX)}, {v(vT)}")
        a("s_nop 1")
        a(f"v_max3_f32 {v(vMX)}, {v(vMX)}, {v(vT)}, s51")
        a(f"v_exp_f32 {v(vAL)}, -{v(vMX)}")
        for i in range(16): a(f"v_sub_f32 {v(NM+i)}, {v(NM+i)}, {v(vMX)}")
        a(f"v_min_f32 {v(vAL)}, 1.0, {v(vAL)}")
        a(f"v_mul_f32 {v(vAL)}, s71, {v(vAL)}")
        for i in range(32): a(f"v_sub_f32 {v(S+i)}, {v(S+i)}, {v(vMX)}")
        a(f"v_mul_f32 {v(vL)}, {v(vL)}, {v(vAL)}")
        a(f"v_mul_f32 {v(vL+1)}, {v(vL+1)}, {v(vAL)}")
        nomul = a.newlabel("nomul")
        a("s_cmp_eq_u32 s71, 0")
        a("s_cselect_b32 s64, 1, 0")
        a(f"s_cbranch_scc1 {nomul}")
        for i in range(64):
            a(f"v_mul_f32 {v(O+i)}, {v(O+i)}, {v(vAL)}")
        a.label(nomul)
        a(f"s_mov_b32 s70, {hex(THR)}")
        a("s_mov_b32 s71, 1.0")
        a.label(nores)
        stamp(4)
        noq = a.newlabel("noq")
        a("s_add_u32 s54, s54, 1")
        a("s_cmp_lg_u32 s54, s57")
        a(f"s_cbranch_scc1 {noq}")
        for i in range(8):
            a(f"ds_read_b128 {v(QF+4*i,4)}, v11 offset:{i*1024}")
        a("s_waitcnt lgkmcnt(2)")
        a.label(noq)
        a("s_mov_b32 s55, s56")
        for i in range(16):
            a(f"v_exp_f32 {v(S+2*i)}, {v(S+2*i)}")
            a(f"v_exp_f32 {v(S+2*i+1)}, {v(S+2*i+1)}")
            if i >= 1:
                a(f"v_cvt_pk_bf16_f32 {v(P+i-1)}, {v(S+2*i-2)}, {v(S+2*i-1)}")
                a(f"v_add_f32 {v(vL)}, {v(vL)}, {v(S+2*i-2)}")
                a(f"v_add_f32 {v(vL+1)}, {v(vL+1)}, {v(S+2*i-1)}")
            if i == 2: tiles()
            if 8 <= i < 8 + D: fload(i-8, par, 0)
        stamp(5, 1)
        a("s_cmp_lt_u32 s54, 17")
        a(f"v_cvt_pk_bf16_f32 {v(P+15)}, {v(S+30)}, {v(S+31)}")
        a(f"v_add_f32 {v(vL)}, {v(vL)}, {v(S+30)}")
        a(f"v_add_f32 {v(vL+1)}, {v(vL+1)}, {v(S+31)}")
        a("s_waitcnt vmcnt(0)")
        a("s_barrier")
        if par == 0:
            a(f"s_cbranch_scc0 .Lattn_fin")
        else:
            a(f"s_branch {loop}")
    for z in zblocks: z()
    def fstep(i, z=False):
        cnt = sum(nin(k) for k in range(i+1, min(16, i+D)))
        a(f"s_waitcnt lgkmcnt({cnt})")
        mfma(i, z)
        if i + D < 16: fload(i+D, 0, 0)
    a.label(".Lattn_finz")
    for i in range(4): fstep(i, True)
    a("s_branch .Lattn_finj")
    a.label(".Lattn_fin")
    a("s_cmp_lg_u32 s64, 0")
    a("s_cbranch_scc1 .Lattn_finz")
    for i in range(16):
        if i == 4: a.label(".Lattn_finj")
        fstep(i)
    stampx(61)
    a(f"v_add_f32 {v(vL)}, {v(vL)}, {v(vL+1)}")
    a(f"v_mov_b32 {v(vT)}, {v(vL)}")
    a("s_nop 1")
    a(f"v_permlane32_swap_b32 {v(vL)}, {v(vT)}")
    a("s_nop 1")
    a(f"v_add_f32 {v(vM+1)}, {v(vL)}, {v(vT)}")
    a(f"v_sub_f32 {v(vM)}, 0, {v(NM)}")
    a("s_lshl_b32 s50, s29, 16")
    a("s_lshl_b32 s51, s30, 13")
    a("s_add_u32 s51, s51, s50")
    a("s_add_u32 s51, s51, 32768")
    a("s_xor_b32 s50, s51, 0x10000")
    a("v_lshlrev_b32 v13, 4, v1")
    a("v_add_u32 v14, s51, v13")
    a("v_add_u32 v15, s50, v13")
    a("v_lshlrev_b32 v13, 3, v1")
    a("s_lshl_b32 s51, s28, 9")
    a(f"s_add_u32 s51, s51, {QS}")
    a("s_xor_b32 s50, s51, 0x800")
    a("v_add_u32 v12, s51, v13")
    a("v_add_u32 v13, s50, v13")
    a(f"ds_write_b64 v12, {v(vM,2)}")
    a("s_nop 4")
    g1 = a.newlabel("g1"); gj = a.newlabel("gj")
    a("s_cmp_eq_u32 s29, 1")
    a(f"s_cbranch_scc1 {g1}")
    for i in range(8):
        a(f"ds_write_b128 v14, {v(O+32+4*i,4)} offset:{i*1024}")
    a("s_waitcnt lgkmcnt(0)")
    a("s_barrier")
    a(f"s_branch {gj}")
    a.label(g1)
    for i in range(8):
        a(f"ds_write_b128 v14, {v(O+4*i,4)} offset:{i*1024}")
    a("s_waitcnt lgkmcnt(0)")
    for i in range(32):
        a(f"v_mov_b32 {v(O+i)}, {v(O+32+i)}")
    a.label(gj)
    a("s_barrier")
    a(f"ds_read_b64 {v(S,2)}, v13")
    for i in range(8):
        a(f"ds_read_b128 {v(O+32+4*i,4)}, v15 offset:{i*1024}")
    a("s_waitcnt lgkmcnt(8)")
    a(f"v_max_f32 {v(vMX)}, {v(vM)}, {v(S)}")
    a(f"v_sub_f32 {v(vAL)}, {v(vM)}, {v(vMX)}")
    a(f"v_sub_f32 {v(vT)}, {v(S)}, {v(vMX)}")
    a(f"v_exp_f32 {v(vAL)}, {v(vAL)}")
    a(f"v_exp_f32 {v(vT)}, {v(vT)}")
    a("s_nop 0")
    a(f"v_mul_f32 {v(vL)}, {v(vM+1)}, {v(vAL)}")
    a(f"v_fmac_f32 {v(vL)}, {v(S+1)}, {v(vT)}")
    a(f"v_rcp_f32 {v(vL)}, {v(vL)}")
    a("s_nop 0")
    a(f"v_mul_f32 {v(vAL)}, {v(vAL)}, {v(vL)}")
    a(f"v_mul_f32 {v(vT)}, {v(vT)}, {v(vL)}")
    a("s_lshl_b32 s50, s59, 13")
    a("s_lshl_b32 s51, s26, 5")
    a("s_add_u32 s50, s50, s51")
    a("s_lshl_b32 s51, s29, 12")
    a("s_add_u32 s50, s50, s51")
    a(f"v_lshlrev_b32 v13, 5, {v(T)}")
    a(f"v_lshl_add_u32 v13, {v(T+1)}, 4, v13")
    a("s_waitcnt lgkmcnt(0)")
    for i in range(32):
        a(f"v_mul_f32 {v(O+i)}, {v(O+i)}, {v(vAL)}")
        a(f"v_fmac_f32 {v(O+i)}, {v(O+32+i)}, {v(vT)}")
    for db in range(2):
        store_bf16_perm(a, O+16*db, FR+8*db, 13, 20, "s50", db*2048, gs=1024)
    stampx(62)
    if dbg:
        a("s_waitcnt vmcnt(0)")
        stampx(63)
        make_srd(a, 84, 46, 0x8000000, 256*8*512)
        a("s_lshl_b32 s50, s2, 12")
        a("s_lshl_b32 s51, s28, 9")
        a("s_add_u32 s50, s50, s51")
        a("v_lshlrev_b32 v13, 2, v1")
        a("buffer_store_dword v3, v13, s[84:87], s50 offen")
        a("buffer_store_dword v9, v13, s[84:87], s50 offen offset:256")
    a.label(end)
    a("s_endpgm")
    return name, 256, (256, 512, 163840)
```

```python
from common import *

class LdsAddr:
    def __init__(self, a, regs, nseg, alloc):
        self.base = regs
        self.seg = {0: regs}
        for sg in range(1, nseg):
            rr = []
            for r in regs:
                n = alloc()
                a(f"v_add_u32 {v(n)}, {hex(sg*65536)}, {v(r)}")
                rr.append(n)
            self.seg[sg] = rr
    def get(self, idx, off):
        sg = off // 65536
        return self.seg[sg][idx], off % 65536

def lane_decomp(a, L, tmp):
    a(f"v_and_b32 {v(tmp)}, 31, {v(L)}")
    a(f"v_lshrrev_b32 {v(tmp+1)}, 5, {v(L)}")
    a(f"v_bfe_u32 {v(tmp+2)}, {v(L)}, 2, 2")
    a(f"v_and_b32 {v(tmp+3)}, 3, {v(L)}")
    a(f"v_bfe_u32 {v(tmp+4)}, {v(L)}, 4, 1")

def xfrag_addrs(a, T, dst, rowbytes, nchunkbits_shift, sbase=None):
    r, h = T, T+1
    a(f"v_bfe_u32 {v(dst)}, {v(r)}, 1, 3")
    a(f"v_xor_b32 {v(dst)}, {v(dst)}, {v(h)}")
    a(f"v_lshlrev_b32 {v(dst)}, 4, {v(dst)}")
    a(f"v_lshl_add_u32 {v(dst)}, {v(r)}, 7, {v(dst)}")
    if sbase is not None:
        a(f"v_add_u32 {v(dst)}, {sbase}, {v(dst)}")
    for sidx in range(1, 4):
        a(f"v_xor_b32 {v(dst+sidx)}, {sidx<<5}, {v(dst)}")

def wfrag_addr(a, T, dst, tmp, RB, perm, nb_sgpr_or_int, const_off):
    h, r4, c, cb = T+1, T+2, T+3, T+4
    a(f"v_lshl_add_u32 {v(dst)}, {v(h)}, {2 if perm else 3}, {v(r4)}")
    a(f"v_mul_u32_u24 {v(dst)}, {RB}, {v(dst)}")
    if RB >= 256:
        a(f"v_xor_b32 {v(tmp)}, {nb_sgpr_or_int}, {v(r4)}")
    else:
        a(f"v_lshrrev_b32 {v(tmp)}, 1, {v(r4)}")
        a(f"v_xor_b32 {v(tmp)}, {nb_sgpr_or_int}, {v(tmp)}")
    a(f"v_lshl_add_u32 {v(dst)}, {v(tmp)}, 6, {v(dst)}")
    a(f"v_lshl_add_u32 {v(dst)}, {v(cb)}, 5, {v(dst)}")
    a(f"v_lshl_add_u32 {v(dst)}, {v(c)}, 3, {v(dst)}")
    if const_off:
        a(f"v_add_u32 {v(dst)}, {hex(const_off)}, {v(dst)}")

def xdma_voff(a, L, sW, dst, tmp, lda, blk=False):
    a(f"v_lshrrev_b32 {v(dst)}, 3, {v(L)}")
    a(f"s_lshl_b32 s90, {sW}, 3")
    a(f"v_add_u32 {v(dst)}, s90, {v(dst)}")
    a(f"v_bfe_u32 {v(tmp)}, {v(dst)}, 1, 3")
    a(f"v_and_b32 {v(tmp+1)}, 7, {v(L)}")
    a(f"v_xor_b32 {v(tmp)}, {v(tmp)}, {v(tmp+1)}")
    if blk:
        a(f"v_lshrrev_b32 {v(tmp+1)}, 5, {v(dst)}")
        a(f"s_mov_b32 s90, {32*lda}")
        a(f"v_mul_lo_u32 {v(tmp+1)}, {v(tmp+1)}, s90")
        a(f"v_and_b32 {v(dst)}, 31, {v(dst)}")
        a(f"v_lshl_add_u32 {v(dst)}, {v(dst)}, 5, {v(tmp+1)}")
        a(f"v_and_b32 {v(tmp+1)}, 1, {v(tmp)}")
        a(f"v_lshl_add_u32 {v(dst)}, {v(tmp+1)}, 4, {v(dst)}")
        a(f"v_lshrrev_b32 {v(tmp)}, 1, {v(tmp)}")
        a(f"v_lshl_add_u32 {v(dst)}, {v(tmp)}, 10, {v(dst)}")
    else:
        a(f"s_mov_b32 s90, {lda}")
        a(f"v_mul_lo_u32 {v(dst)}, {v(dst)}, s90")
        a(f"v_lshl_add_u32 {v(dst)}, {v(tmp)}, 4, {v(dst)}")

def wdma_voff(a, L, sW, dst, tmp, ldb, BNs):
    LPR = BNs // 8
    RPI = 64 // LPR
    lg = LPR.bit_length() - 1
    a(f"v_lshrrev_b32 {v(dst)}, {lg}, {v(L)}")
    a(f"s_mul_i32 s90, {sW}, {RPI}")
    a(f"v_add_u32 {v(dst)}, s90, {v(dst)}")
    if BNs >= 128:
        a(f"v_and_b32 {v(tmp)}, 3, {v(dst)}")
    else:
        a(f"v_bfe_u32 {v(tmp)}, {v(dst)}, 1, 1")
    a(f"v_lshlrev_b32 {v(tmp)}, 2, {v(tmp)}")
    a(f"s_mov_b32 s90, {ldb}")
    a(f"v_mul_lo_u32 {v(dst)}, {v(dst)}, s90")
    a(f"v_and_b32 {v(tmp+1)}, {LPR-1}, {v(L)}")
    a(f"v_xor_b32 {v(tmp)}, {v(tmp)}, {v(tmp+1)}")
    a(f"v_lshl_add_u32 {v(dst)}, {v(tmp)}, 4, {v(dst)}")
    return RPI

MF = "v_mfma_f32_32x32x16_bf16"

import os
GDBG = os.environ.get('GDBG', '')
def gstamp(a, name, idx):
    if GDBG != name: return
    a("s_memtime s[80:81]")
    a("s_waitcnt lgkmcnt(0)")
    a(f"v_writelane_b32 v3, s80, {idx}")
def rstamp(a, name, idx):
    if GDBG != name: return
    a("s_memrealtime s[80:81]")
    a("s_waitcnt lgkmcnt(0)")
    a(f"v_writelane_b32 v3, s80, {idx}")
def gdump(a, name):
    if GDBG != name: return
    gstamp(a, name, 62)
    a("s_waitcnt vmcnt(0)")
    gstamp(a, name, 63)
    rstamp(a, name, 59)
    make_srd(a, 84, 46, 0x8000000, 256*8*512)
    a("s_lshl_b32 s50, s2, 12")
    a("s_lshl_b32 s51, s28, 9")
    a("s_add_u32 s50, s50, s51")
    a("v_lshlrev_b32 v13, 2, v1")
    a("buffer_store_dword v3, v13, s[84:87], s50 offen")

def gemm_A(a, name, P):
    NW, WM, WN, TM, TN, NST, KT = (P[k] for k in ('NW','WM','WN','TM','TN','NST','KT'))
    lda, ldb, nsub, perm = P['lda'], P['ldb'], P['nsub'], P['perm']
    BM = WM*TM*32
    BN = WN*TN*32
    BNs = BN // nsub
    TNs = TN // nsub
    RB = BNs*2
    XB = BM*128
    WB = BNs*128
    STG = XB + nsub*WB
    kernel_begin(a, name)
    end = a.newlabel("end")
    a(f"s_cmp_ge_u32 s2, {P['nwg']}")
    a(f"s_cbranch_scc1 {end}")
    gstamp(a, name, 0)
    rstamp(a, name, 58)
    P['setup'](a, 0)
    a("v_and_b32 v1, 63, v0")
    a("v_lshrrev_b32 v2, 6, v0")
    a("s_nop 0")
    a("v_readfirstlane_b32 s28, v2")
    nreg = [16]
    def alloc(n=1, al=1):
        nreg[0] = (nreg[0] + al - 1)//al*al
        r = nreg[0]; nreg[0] += n
        return r
    T = 4
    vXd = alloc(); vWd = alloc()
    xblk = P.get('xblk', False)
    a("s_nop 2")
    xdma_voff(a, 1, "s28", vXd, 10, lda, xblk)
    RPI = wdma_voff(a, 1, "s28", vWd, 10, ldb, BNs)
    a(f"s_lshl_b32 s33, s28, 10")
    gstamp(a, name, 20)
    a("s_waitcnt lgkmcnt(0)")
    P['setup'](a, 1)
    NSQ = P.get('nseq', 1); KT1 = KT; KT = KT*NSQ
    C = {}
    def late():
        a(f"s_and_b32 s29, s28, {WN-1}")
        a(f"s_lshr_b32 s30, s28, {WN.bit_length()-1}")
        lane_decomp(a, 1, T)
        xa = alloc(4)
        a(f"s_mul_i32 s31, s30, {TM*32*128}")
        xfrag_addrs(a, T, xa, 128, 0, "s31")
        wa = []
        for sub in range(nsub):
            for t in range(TNs):
                r = alloc()
                a(f"s_mul_i32 s31, s29, {TNs}")
                a(f"s_add_u32 s31, s31, {t}")
                a(f"s_and_b32 s32, s31, 3")
                a(f"s_lshr_b32 s31, s31, 2")
                a(f"s_lshl_b32 s31, s31, 8")
                wfrag_addr(a, T, r, 10, RB, perm, "s32", XB + sub*WB)
                a(f"v_add_u32 {v(r)}, s31, {v(r)}")
                wa.append(r)
        nseg = (NST*STG + 65535)//65536
        C['XA'] = LdsAddr(a, [xa+i for i in range(4)], nseg, alloc)
        C['WA'] = LdsAddr(a, wa, nseg, alloc)
        P['setup'](a, 2)
        if 'init' in P: P['init'](a, dict(acc=acc, TM=TM, TN=TN, T=T, alloc=alloc))
    fr = [alloc((TM+TN)*4, 4) for _ in range(2)]
    acc = alloc(TM*TN*16*NSQ, 4)
    nX = BM//8//NW
    nWl = BNs//8//NW
    L = nX + nsub*nWl
    def dma(t):
        st = t % NST
        out = []
        for jj in range(nX):
            out.append([f"s_add_u32 m0, s33, {st*STG + jj*NW*1024}",
                        f"s_add_u32 s34, s24, {(t%KT1)*(4096 if xblk else 128) + jj*8*NW*lda}",
                        f"buffer_load_dwordx4 {v(vXd)}, s[4:7], s34 offen lds"])
        for sub in range(nsub):
            for jj in range(nWl):
                out.append([f"s_add_u32 m0, s33, {st*STG + XB + sub*WB + jj*NW*1024}",
                            f"s_add_u32 s34, s{25+sub}, {(t%KT1)*64*ldb + jj*NW*RPI*ldb + (t//KT1)*BNs*2}",
                            f"buffer_load_dwordx4 {v(vWd)}, {s(8+4*sub,4)}, s34 offen lds"])
        return out
    def reads(t, ks, f):
        st = t % NST
        for mb in range(TM):
            r, o = C['XA'].get(ks, st*STG + mb*4096)
            a(f"ds_read_b128 {v(f+4*mb,4)}, {v(r)} offset:{o}")
        for nb in range(TN):
            for half in range(2):
                off = st*STG + 16*ks*RB + half*(8 if perm else 4)*RB
                r, o = C['WA'].get(nb, off)
                a(f"ds_read_b64_tr_b16 {v(f+4*TM+4*nb+2*half,2)}, {v(r)} offset:{o}")
    if 'pre' in P: P['pre'](a, dict(alloc=alloc))
    wfirst = 'sync' in P
    if wfirst:
        for t in range(NST):
            for g in dma(t)[nX:]:
                for i in g: a(i)
        gstamp(a, name, 1)
        P['sync'](a, dict(alloc=alloc, acc=acc))
        gstamp(a, name, 2)
        for t in range(NST):
            for g in dma(t)[:nX]:
                for i in g: a(i)
        a(f"s_waitcnt vmcnt({nX*(NST-1)})")
    else:
        NPRO = int(os.environ.get('NPRO', P.get('npro', NST-1)))
        NPRO = max(1, min(NPRO, NST))
        gstamp(a, name, 21)
        for g in dma(0):
            for i in g: a(i)
        gstamp(a, name, 22)
        late()
        gstamp(a, name, 23)
        for t in range(1, NPRO):
            for g in dma(t):
                for i in g: a(i)
        gstamp(a, name, 1)
        extra = 0
        if 'mid' in P: extra = P['mid'](a, dict(alloc=alloc, L=L, NST=NPRO))
        gstamp(a, name, 2)
        a(f"s_waitcnt vmcnt({L*(NPRO-1) + extra})")
    gstamp(a, name, 24)
    a("s_barrier")
    gstamp(a, name, 25)
    reads(0, 0, fr[0])
    hooks = P.get('hooks', {})
    if 0 in hooks: hooks[0](a)
    d = []
    for t in range(NPRO, NST): d += dma(t)
    for t in range(KT):
        for ks in range(4):
            a("s_waitcnt lgkmcnt(0)")
            if ks < 3:
                reads(t, ks+1, fr[(ks+1)&1])
            elif t + 1 < KT:
                for g in d:
                    for i in g: a(i)
                if wfirst and t < NST-2:
                    a(f"s_waitcnt vmcnt({nX*(NST-2-t) + L*t})")
                else:
                    a(f"s_waitcnt vmcnt({L*min(NST-2, KT-2-t) + P.get('xw', {}).get(t, 0)})")
                a("s_barrier")
                gstamp(a, name, 3+t)
                reads(t+1, 0, fr[0])
                d = dma(t+NST) if t+NST < KT else []
                post = hooks.get(t+1)
            f = fr[ks&1]
            for nb in range(TN):
                for mb in range(TM):
                    c = acc + (nb*TM+mb)*16 + (t//KT1)*TM*TN*16
                    src = "0" if (t%KT1 == 0 and ks == 0) else v(c,16)
                    a(f"{MF} {v(c,16)}, {v(f+4*TM+4*nb,4)}, {v(f+4*mb,4)}, {src}")
                    if d:
                        for i in d.pop(0): a(i)
            if ks == 3 and t + 1 < KT and post: post(a)
            if (t, ks) in hooks: hooks[(t, ks)](a)
    a("s_nop 15")
    gstamp(a, name, 61)
    P['epilogue'](a, dict(acc=acc, TM=TM, TN=TN, T=T, alloc=alloc, TNs=TNs, fr=fr))
    gdump(a, name)
    a.label(end)
    a("s_endpgm")
    return name, nreg[0], (P['nwg'], NW*64, NST*STG + P.get('xlds', 0))
```

```python
from common import *
from gemm import *
import os

def store_bf16_perm(a, c, tmp, voff, srd, soff, imm, cvt="v_cvt_pk_bf16_f32", gs=32, pol=""):
    for g in range(2):
        t = tmp + 4*g
        for i in range(4):
            a(f"{cvt} {v(t+i)}, {v(c+8*g+2*i)}, {v(c+8*g+2*i+1)}")
        a(f"buffer_store_dwordx4 {v(t,4)}, {v(voff)}, {s(srd,4)}, {soff} offen offset:{imm+gs*g}{pol}")

def gen_kv(a):
    def setup(a, ph):
        if ph == 0:
            load_ptr(a, 40, 'ckv'); load_ptr(a, 42, 'wuk'); load_ptr(a, 44, 'wuv'); load_ptr(a, 46, 'ws'); load_ptr(a, 48, 'x')
            load_ptr(a, 72, 'c'); load_ptr(a, 76, 'wmod'); load_ptr(a, 92, 'dbg')
            a("s_and_b32 s35, s2, 7")
            a("s_lshr_b32 s36, s2, 3")
            a("s_and_b32 s37, s36, 1")
            a("s_lshl_b32 s38, s35, 1")
            a("s_add_u32 s37, s37, s38")
            if os.environ.get('FLIPKV'): a("s_xor_b32 s37, s37, 2")
            a("s_bfe_u32 s38, s36, 0x10001")
            a("s_lshr_b32 s39, s36, 2")
        if ph == 1:
            make_srd(a, 4, 40, 0, 2048*1024)
            a("s_cmp_eq_u32 s38, 1")
            a("s_cselect_b32 s50, s44, s42")
            a("s_cselect_b32 s51, s45, s43")
            make_srd(a, 8, 50, 0, 512*8192)
            a("s_lshl_b32 s24, s39, 18")
            a("s_lshl_b32 s25, s37, 9")
            make_srd(a, 56, 48, 0, 2048*1024)
            make_srd(a, 72, 72, 0, 1024)
            make_srd(a, 76, 76, 0, 512*6144)
        if ph == 2:
            a(f"s_mul_i32 s52, s38, {WS_V-WS_K}")
            a("s_add_u32 s52, s46, s52")
            a("s_addc_u32 s53, s47, 0")
            make_srd(a, 16, 52, WS_K, 32*2048*256)
            make_srd(a, 60, 46, WS_MOD, 12288)
            make_srd(a, 64, 46, WS_H, 2048*1024)
            make_srd(a, 92, 92, 0, 256)
    st = {}
    NEED = int(os.environ.get('NEED', '64'))
    def pre(a, c):
        t = c['alloc'](40, 4); st['t'] = t
        a("s_lshl_b32 s68, s2, 3")
        a("s_add_u32 s68, s68, s28")
        a("s_lshl_b32 s68, s68, 10")
        a(f"v_lshlrev_b32 {v(t)}, 4, v1")
        a(f"v_lshlrev_b32 {v(t+1)}, 5, v1")
        a(f"buffer_load_dwordx4 {v(t+4,4)}, {v(t)}, s[56:59], s68 offen")
        a("s_min_u32 s69, s36, 23")
        a("s_mul_i32 s70, s35, 24")
        a("s_add_u32 s69, s69, s70")
        a(f"v_lshrrev_b32 {v(t+2)}, 2, v0")
        a(f"v_lshlrev_b32 {v(t+3)}, 3, {v(t+2)}")
        a(f"buffer_load_dwordx2 {v(t+16,2)}, {v(t+3)}, s[72:75], 0 offen")
        a(f"v_mul_u32_u24 {v(t+2)}, {4*6144}, {v(t+2)}")
        a(f"v_and_b32 {v(t+3)}, 3, v0")
        a(f"v_lshl_add_u32 {v(t+2)}, {v(t+3)}, 3, {v(t+2)}")
        a("s_lshl_b32 s70, s69, 5")
        for j in range(4):
            a(f"buffer_load_dwordx2 {v(t+20+2*j,2)}, {v(t+2)}, s[76:79], s70 offen")
            if j < 3: a(f"s_add_u32 s70, s70, 6144")
    def silu_bf(a, d, x, tmp):
        a(f"v_mul_f32 {v(tmp)}, 0xbfb8aa3b, {v(x)}")
        a(f"v_exp_f32 {v(tmp)}, {v(tmp)}")
        a("s_nop 0")
        a(f"v_add_f32 {v(tmp)}, 1.0, {v(tmp)}")
        a(f"v_rcp_f32 {v(tmp)}, {v(tmp)}")
        a("s_nop 0")
        a(f"v_mul_f32 {v(tmp)}, {v(tmp)}, {v(x)}")
        round_bf16(a, d, tmp)
    def mid(a, c):
        t = st['t']
        a(f"s_waitcnt vmcnt({c['L']*c['NST']})")
        for i in range(2):
            a(f"v_lshlrev_b32 {v(t+28+2*i)}, 16, {v(t+16+i)}")
            a(f"v_and_b32 {v(t+29+2*i)}, 0xffff0000, {v(t+16+i)}")
        for j in range(4): silu_bf(a, t+28+j, t+28+j, t+36)
        for j in range(4):
            for i in range(2):
                a(f"v_lshlrev_b32 {v(t+36)}, 16, {v(t+20+2*j+i)}")
                a(f"v_and_b32 {v(t+37)}, 0xffff0000, {v(t+20+2*j+i)}")
                op = "v_mul_f32" if j == 0 else "v_fmac_f32"
                a(f"{op} {v(t+32+2*i)}, {v(t+36)}, {v(t+28+j)}")
                a(f"{op} {v(t+33+2*i)}, {v(t+37)}, {v(t+28+j)}")
        a("s_nop 1")
        for ror in (8, 4):
            for i in range(4):
                a(f"v_add_f32_dpp {v(t+32+i)}, {v(t+32+i)}, {v(t+32+i)} row_ror:{ror} row_mask:0xf bank_mask:0xf")
        for sw in ("v_permlane16_swap_b32", "v_permlane32_swap_b32"):
            for i in range(4): a(f"v_mov_b32 {v(t+36+i)}, {v(t+32+i)}")
            a("s_nop 1")
            for i in range(4): a(f"{sw} {v(t+32+i)}, {v(t+36+i)}")
            a("s_nop 1")
            for i in range(4): a(f"v_add_f32 {v(t+32+i)}, {v(t+32+i)}, {v(t+36+i)}")
        a("s_lshl_b32 s70, s28, 6")
        a("s_add_u32 s70, s70, 147456")
        a(f"v_lshlrev_b32 {v(t+3)}, 4, {v(t+3)}")
        a(f"v_add_u32 {v(t+3)}, s70, {v(t+3)}")
        a(f"ds_write_b128 {v(t+3)}, {v(t+32,4)}")
        X = t+8; sm, tt, va = t+16, t+17, t+18
        unpack8(a, t+4, X)
        a(f"v_add_f32 {v(sm)}, {v(X)}, {v(X+1)}")
        for i in range(2, 8): a(f"v_add_f32 {v(sm)}, {v(sm)}, {v(X+i)}")
        wave_sum(a, sm, tt)
        a(f"v_mul_f32 {v(sm)}, 0x3b000000, {v(sm)}")
        for i in range(8): a(f"v_sub_f32 {v(X+i)}, {v(X+i)}, {v(sm)}")
        a(f"v_mul_f32 {v(va)}, {v(X)}, {v(X)}")
        for i in range(1, 8): a(f"v_fmac_f32 {v(va)}, {v(X+i)}, {v(X+i)}")
        wave_sum(a, va, tt)
        a(f"v_mov_b32 {v(tt)}, 0x3727c5ac")
        a(f"v_fmac_f32 {v(tt)}, 0x3b000000, {v(va)}")
        a(f"v_rsq_f32 {v(tt)}, {v(tt)}")
        a("s_nop 0")
        for i in range(8): a(f"v_mul_f32 {v(X+i)}, {v(X+i)}, {v(tt)}")
        a("s_waitcnt lgkmcnt(0)")
        return 0
    def h0(a):
        t = st['t']; sk = a.newlabel("sk")
        a("s_cmp_lg_u32 s28, 0")
        a(f"s_cbranch_scc1 {sk}")
        a("s_cmp_ge_u32 s36, 24")
        a(f"s_cbranch_scc1 {sk}")
        a(f"v_and_b32 {v(t+2)}, 15, v1")
        a(f"v_lshlrev_b32 {v(t+2)}, 2, {v(t+2)}")
        a(f"v_add_u32 {v(t+3)}, 0x24000, {v(t+2)}")
        for w in range(8): a(f"ds_read_b32 {v(t+20+w)}, {v(t+3)} offset:{w*64}")
        a("s_waitcnt lgkmcnt(0)")
        for w in range(1, 8): a(f"v_add_f32 {v(t+20)}, {v(t+20)}, {v(t+20+w)}")
        round_bf16(a, t+20, t+20)
        a("s_lshr_b32 s70, s69, 5")
        a("s_cmp_eq_u32 s70, 1")
        a("s_cselect_b32 s71, 1.0, 0")
        a("s_cmp_eq_u32 s70, 4")
        a("s_cselect_b32 s71, 1.0, s71")
        a(f"v_add_f32 {v(t+20)}, s71, {v(t+20)}")
        round_bf16(a, t+20, t+20)
        a("s_lshl_b32 s70, s69, 6")
        a(f"buffer_store_dword {v(t+20)}, {v(t+2)}, s[60:63], s70 offen sc0 sc1")
        a.label(sk)
    def h1(a):
        t = st['t']; sk = a.newlabel("sk")
        a("s_cmp_lg_u32 s28, 0")
        a(f"s_cbranch_scc1 {sk}")
        a("s_cmp_ge_u32 s36, 24")
        a(f"s_cbranch_scc1 {sk}")
        a("s_cmp_ge_u32 s69, 64")
        a(f"s_cbranch_scc1 {sk}")
        a(f"v_mov_b32 {v(t+2)}, 0")
        a(f"v_mov_b32 {v(t+3)}, 1")
        a("s_mov_b64 exec, 1")
        a(f"buffer_atomic_add {v(t+3)}, {v(t+2)}, s[92:95], 0 offen sc1")
        a("s_mov_b64 exec, -1")
        a.label(sk)
    def h5(a):
        t = st['t']
        a(f"v_mov_b32 {v(t+2)}, 0")
        a(f"buffer_load_dword {v(t+3)}, {v(t+2)}, s[92:95], 0 offen sc0 sc1")
    def h6(a):
        t = st['t']; ok = a.newlabel("ok"); lp = a.newlabel("lp"); dn = a.newlabel("dn"); fl = a.newlabel("fl")
        G, S = t+20, t+28
        a("s_movk_i32 s71, 0x2000")
        a("s_waitcnt vmcnt(0)")
        a.label(lp)
        a(f"v_readfirstlane_b32 s70, {v(t+3)}")
        a("s_nop 3")
        a(f"s_cmp_ge_u32 s70, {NEED}")
        a(f"s_cbranch_scc1 {ok}")
        a("s_sleep 4")
        a(f"buffer_load_dword {v(t+3)}, {v(t+2)}, s[92:95], 0 offen sc0 sc1")
        a("s_waitcnt vmcnt(0)")
        a("s_sub_u32 s71, s71, 1")
        a("s_cmp_lg_u32 s71, 0")
        a(f"s_cbranch_scc1 {lp}")
        for i in range(16): a(f"v_mov_b32 {v(G+i)}, 0")
        a("s_mov_b32 s70, 0")
        a("s_mov_b32 s71, 0")
        a.label(fl)
        a(f"buffer_load_ushort {v(t+16)}, {v(t+2)}, s[72:75], s70 offen")
        for dst, off in ((S, 0), (G, 1024)):
            a(f"buffer_load_dwordx4 {v(t+36,4)}, {v(t)}, s[76:79], s71 offen offset:{off}")
            a("s_waitcnt vmcnt(0)")
            if off == 0:
                a(f"v_lshlrev_b32 {v(t+16)}, 16, {v(t+16)}")
                silu_bf(a, t+16, t+16, t+17)
            for i in range(4):
                a(f"v_lshlrev_b32 {v(t+17)}, 16, {v(t+36+i)}")
                a(f"v_and_b32 {v(t+18)}, 0xffff0000, {v(t+36+i)}")
                a(f"v_fmac_f32 {v(dst+2*i)}, {v(t+17)}, {v(t+16)}")
                a(f"v_fmac_f32 {v(dst+2*i+1)}, {v(t+18)}, {v(t+16)}")
        a("s_add_u32 s70, s70, 2")
        a("s_add_u32 s71, s71, 6144")
        a("s_cmp_lt_u32 s70, 1024")
        a(f"s_cbranch_scc1 {fl}")
        for i in range(16): round_bf16(a, G+i, G+i)
        for i in range(8):
            a(f"v_add_f32 {v(G+i)}, 1.0, {v(G+i)}")
            round_bf16(a, G+i, G+i)
        a(f"s_branch {dn}")
        a.label(ok)
        a(f"buffer_load_dwordx4 {v(G,4)}, {v(t+1)}, s[60:63], 0 offen offset:2048 sc0 sc1")
        a(f"buffer_load_dwordx4 {v(G+4,4)}, {v(t+1)}, s[60:63], 0 offen offset:2064 sc0 sc1")
        a(f"buffer_load_dwordx4 {v(S,4)}, {v(t+1)}, s[60:63], 0 offen sc0 sc1")
        a(f"buffer_load_dwordx4 {v(S+4,4)}, {v(t+1)}, s[60:63], 0 offen offset:16 sc0 sc1")
        a.label(dn)
    def h7(a):
        t = st['t']; X = t+8; G, S = t+20, t+28
        for i in range(8): a(f"v_fma_f32 {v(X+i)}, {v(X+i)}, {v(G+i)}, {v(S+i)}")
        for i in range(4): a(f"v_cvt_pk_bf16_f32 {v(t+4+i)}, {v(X+2*i)}, {v(X+2*i+1)}")
        a(f"buffer_store_dwordx4 {v(t+4,4)}, {v(t)}, s[64:67], s68 offen")
    def init(a, c):
        T = c['T']
        st['acc'] = c['acc']
        vo = c['alloc'](); st['vo'] = vo; st['tmp'] = c['alloc'](16, 4)
        a(f"v_lshlrev_b32 {v(vo)}, 5, {v(T)}")
        a(f"v_lshl_add_u32 {v(vo)}, {v(T+1)}, 4, {v(vo)}")
        a("s_lshl_b32 s84, s39, 16")
        a("s_lshl_b32 s54, s30, 14")
        a("s_add_u32 s84, s84, s54")
        a("s_lshl_b32 s54, s37, 20")
        a("s_add_u32 s84, s84, s54")
        a("s_lshl_b32 s54, s29, 12")
        a("s_add_u32 s84, s84, s54")
    def part(a, sub, mb, nb, pol=""):
        a(f"s_add_u32 s54, s84, {mb*32*256 + sub*2048*256}")
        store_bf16_perm(a, st['acc'] + sub*64 + (nb*2+mb)*16, st['tmp'] + 8*(nb&1), st['vo'], 16, "s54", nb*2048, gs=1024, pol=pol)
    def epi(a, c):
        for mb in range(2):
            for nb in range(2): part(a, 1, mb, nb)
        a("s_waitcnt vmcnt(8)")
        h7(a)
    POL = os.environ.get('KVPOL', '')
    def seq(*fs):
        def f(a):
            for x in fs: x(a)
        return f
    pp = lambda mb, nb: (lambda a: part(a, 0, mb, nb, POL))
    P = dict(NW=8, WM=4, WN=2, TM=2, TN=2, NST=3, KT=8, nseq=2, lda=1024, ldb=8192, nsub=1, perm=False, nwg=256,
             setup=setup, epilogue=epi, mid=mid, pre=pre, xlds=512, init=init,
             xw={13: 1, 14: 1},
             hooks={0: h0, 3: h1, 9: pp(0,0), 10: pp(0,1), 11: pp(1,0), 12: pp(1,1), (13,1): h5, (15,1): h6})
    return gemm_A(a, "k_kv_kernel", P)

def gen_oproj4(a):
    def setup(a, ph):
        if ph == 0:
            load_ptr(a, 40, 'wo'); load_ptr(a, 46, 'ws')
            a("s_and_b32 s35, s2, 7")
            a("s_lshr_b32 s36, s2, 3")
            a("s_lshr_b32 s37, s35, 1")
            if os.environ.get('FLIP'): a("s_xor_b32 s37, s37, 1")
            a("s_and_b32 s38, s35, 1")
            a("s_lshl_b32 s38, s38, 3")
            a("s_lshr_b32 s39, s36, 2")
            a("s_add_u32 s39, s39, s38")
            a("s_and_b32 s38, s36, 3")
        if ph == 1:
            make_srd(a, 4, 46, WS_CTX, 2048*8192)
            make_srd(a, 8, 40, 0, 4096*1024)
            a("s_lshl_b32 s24, s39, 20")
            a("s_lshl_b32 s54, s37, 16")
            a("s_add_u32 s24, s24, s54")
            a("s_lshl_b32 s25, s37, 20")
            a("s_lshl_b32 s54, s38, 8")
            a("s_add_u32 s25, s25, s54")
        if ph == 2:
            make_srd(a, 16, 46, WS_PART, 4*2048*1024)
    def epi(a, c):
        acc, TM, TN, T = c['acc'], c['TM'], c['TN'], c['T']
        vo = c['alloc'](); tmp = c['fr'][0]
        PB = int(os.environ.get('PB', '1'))
        a(f"v_lshlrev_b32 {v(vo)}, {5 if PB else 10}, {v(T)}")
        a(f"v_lshl_add_u32 {v(vo)}, {v(T+1)}, 4, {v(vo)}")
        a("s_lshl_b32 s34, s37, 21")
        a("s_lshl_b32 s54, s39, 17")
        a("s_add_u32 s34, s34, s54")
        a(f"s_mul_i32 s54, s30, {TM*32*1024}")
        a("s_add_u32 s34, s34, s54")
        a(f"s_lshl_b32 s54, s38, {13 if PB else 8}")
        a("s_add_u32 s34, s34, s54")
        a(f"s_mul_i32 s54, s29, {TN*32*2*(32 if PB else 1)}")
        a("s_add_u32 s34, s34, s54")
        kk = 0
        for mb in range(TM):
            a(f"s_add_u32 s54, s34, {mb*32*1024}")
            for nb in range(TN):
                store_bf16_perm(a, acc+(nb*TM+mb)*16, tmp + 8*(kk % 4), vo, 16, "s54", nb*(2048 if PB else 64), "v_cvt_pkrtz_f16_f32", gs=(1024 if PB else 32))
                kk += 1
    P = dict(NW=4, WM=2, WN=2, TM=2, TN=2, NST=4, KT=16, lda=8192, ldb=1024, nsub=1, perm=False, nwg=256, xblk=True,
             setup=setup, epilogue=epi)
    return gemm_A(a, "k_oproj_kernel", P)

def gen_oproj(a):
    def setup(a, ph):
        if ph == 0:
            load_ptr(a, 40, 'wo'); load_ptr(a, 46, 'ws')
            a("s_and_b32 s37, s2, 7")
            a("s_lshr_b32 s36, s2, 3")
            a("s_lshr_b32 s39, s36, 2")
            a("s_and_b32 s38, s36, 3")
        if ph == 1:
            make_srd(a, 4, 46, WS_CTX, 2048*8192)
            make_srd(a, 8, 40, 0, 4096*1024)
            a("s_lshl_b32 s24, s39, 21")
            a("s_lshl_b32 s54, s37, 15")
            a("s_add_u32 s24, s24, s54")
            a("s_lshl_b32 s25, s37, 19")
            a("s_lshl_b32 s54, s38, 8")
            a("s_add_u32 s25, s25, s54")
        if ph == 2:
            make_srd(a, 16, 46, WS_PART, 8*2048*1024)
    def epi(a, c):
        acc, TM, TN, T = c['acc'], c['TM'], c['TN'], c['T']
        vo = c['alloc'](); tmp = c['fr'][0]
        a(f"v_lshlrev_b32 {v(vo)}, 5, {v(T)}")
        a(f"v_lshl_add_u32 {v(vo)}, {v(T+1)}, 4, {v(vo)}")
        a("s_lshl_b32 s34, s37, 21")
        a("s_lshl_b32 s54, s39, 18")
        a("s_add_u32 s34, s34, s54")
        a(f"s_mul_i32 s54, s30, {TM*32*1024}")
        a("s_add_u32 s34, s34, s54")
        a(f"s_lshl_b32 s54, s38, 13")
        a("s_add_u32 s34, s34, s54")
        a(f"s_mul_i32 s54, s29, {TN*32*2*32}")
        a("s_add_u32 s34, s34, s54")
        kk = 0
        for mb in range(TM):
            a(f"s_add_u32 s54, s34, {mb*32*1024}")
            for nb in range(TN):
                store_bf16_perm(a, acc+(nb*TM+mb)*16, tmp + 8*(kk % 4), vo, 16, "s54", nb*2048, "v_cvt_pkrtz_f16_f32", gs=1024)
                kk += 1
    P = dict(NW=8, WM=4, WN=2, TM=2, TN=2, NST=3, KT=8, lda=8192, ldb=1024, nsub=1, perm=False, nwg=256, xblk=True,
             setup=setup, epilogue=epi)
    return gemm_A(a, "k_oproj_kernel", P)

def gen_gu(a):
    def setup(a, ph):
        if ph == 0:
            load_ptr(a, 40, 'wg'); load_ptr(a, 42, 'wu'); load_ptr(a, 46, 'ws')
            a("s_and_b32 s35, s2, 7")
            a("s_lshr_b32 s36, s2, 3")
            a("s_mul_i32 s37, s36, 37")
            a("s_lshr_b32 s37, s37, 8")
            a("s_mul_i32 s38, s37, 7")
            a("s_sub_u32 s38, s36, s38")
            a("s_lshr_b32 s39, s35, 1")
            a("s_lshl_b32 s39, s39, 2")
            a("s_add_u32 s39, s39, s37")
            a("s_and_b32 s54, s35, 1")
            a("s_mul_i32 s54, s54, 7")
            a("s_add_u32 s38, s38, s54")
        if ph == 1:
            make_srd(a, 4, 46, WS_H2, 2048*1024)
            make_srd(a, 8, 40, 0, 512*3584)
            make_srd(a, 12, 42, 0, 512*3584)
            a("s_lshl_b32 s24, s39, 17")
            a("s_lshl_b32 s25, s38, 8")
            a("s_mov_b32 s26, s25")
        if ph == 2:
            make_srd(a, 16, 46, WS_ACT, 2048*3584)
    NEED2 = int(os.environ.get('NEED2', '14'))
    def sync(a, c):
        A = c['acc']
        MV = c['alloc'](24, 4)
        o = c['alloc'](4, 4)
        tm = c['alloc'](4, 4)
        a(f"v_lshlrev_b32 {v(o)}, 4, v1")
        a(f"v_and_b32 {v(o+1)}, 1, v1")
        a(f"v_lshlrev_b32 {v(o+1)}, 3, {v(o+1)}")
        a(f"v_and_b32 {v(tm)}, 62, v1")
        a(f"v_lshl_add_u32 {v(o+1)}, {v(tm)}, 4, {v(o+1)}")
        a(f"v_lshlrev_b32 {v(o+2)}, 1, {v(o+1)}")
        a(f"v_mov_b32 {v(o+3)}, 0")
        def loads(R, srow):
            a(f"buffer_load_dwordx2 {v(R,2)}, {v(o+1)}, s[56:59], {srow} offen")
            a(f"buffer_load_dwordx2 {v(R+2,2)}, {v(o+1)}, s[56:59], {srow} offen offset:16")
            for p in range(4):
                if p: a(f"s_add_u32 s71, {srow}, {p*2048*1024}")
                a(f"buffer_load_dwordx4 {v(R+4+4*p,4)}, {v(o)}, s[64:67], {'s71' if p else srow} offen")
        def compute(R, srow, W):
            X, S, U = W, W+8, W+16
            unpack8(a, R+4, S)
            for p in range(1, 4):
                unpack8(a, R+4+4*p, U)
                for i in range(8): a(f"v_add_f32 {v(S+i)}, {v(S+i)}, {v(U+i)}")
            unpack8(a, R, X)
            for i in range(8): a(f"v_fmac_f32 {v(X+i)}, {v(S+i)}, {v(MV+i)}")
            a(f"s_lshl_b32 s71, {srow}, 1")
            a(f"buffer_store_dwordx4 {v(X,4)}, {v(o+2)}, s[72:75], s71 offen")
            a(f"buffer_store_dwordx4 {v(X+4,4)}, {v(o+2)}, s[72:75], s71 offen offset:32")
            sm, tt, va = tm, tm+1, tm+2
            a(f"v_add_f32 {v(sm)}, {v(X)}, {v(X+1)}")
            for i in range(2, 8): a(f"v_add_f32 {v(sm)}, {v(sm)}, {v(X+i)}")
            wave_sum(a, sm, tt)
            a(f"v_mul_f32 {v(sm)}, 0x3b000000, {v(sm)}")
            for i in range(8): a(f"v_sub_f32 {v(S+i)}, {v(X+i)}, {v(sm)}")
            a(f"v_mul_f32 {v(va)}, {v(S)}, {v(S)}")
            for i in range(1, 8): a(f"v_fmac_f32 {v(va)}, {v(S+i)}, {v(S+i)}")
            wave_sum(a, va, tt)
            a(f"v_mov_b32 {v(tt)}, 0x3727c5ac")
            a(f"v_fmac_f32 {v(tt)}, 0x3b000000, {v(va)}")
            a(f"v_rsq_f32 {v(tt)}, {v(tt)}")
            a("s_nop 0")
            for i in range(8): a(f"v_mul_f32 {v(S+i)}, {v(S+i)}, {v(tt)}")
            for i in range(8): a(f"v_fma_f32 {v(S+i)}, {v(S+i)}, {v(MV+16+i)}, {v(MV+8+i)}")
            for i in range(4): a(f"v_cvt_pk_bf16_f32 {v(U+i)}, {v(S+2*i)}, {v(S+2*i+1)}")
            a(f"buffer_store_dwordx2 {v(U,2)}, {v(o+1)}, s[4:7], {srow} offen sc0 sc1")
            a(f"buffer_store_dwordx2 {v(U+2,2)}, {v(o+1)}, s[4:7], {srow} offen offset:16 sc0 sc1")
        a("s_lshl_b32 s68, s38, 3")
        a("s_add_u32 s68, s68, s28")
        a("s_lshl_b32 s68, s68, 10")
        a("s_add_u32 s68, s68, s24")
        a("s_lshl_b32 s69, s38, 1")
        a("s_add_u32 s69, s69, s28")
        a("s_add_u32 s69, s69, 112")
        a("s_lshl_b32 s69, s69, 10")
        a("s_add_u32 s69, s69, s24")
        a("s_lshr_b32 s70, s38, 3")
        a("s_lshr_b32 s71, s28, 1")
        a("s_or_b32 s70, s70, s71")
        loads(A, "s68")
        for j, col in enumerate((1024, 1536, 2048)):
            a(f"s_movk_i32 s71, {col*4}")
            a(f"buffer_load_dwordx4 {v(MV+8*j,4)}, {v(o+2)}, s[60:63], s71 offen")
            a(f"buffer_load_dwordx4 {v(MV+8*j+4,4)}, {v(o+2)}, s[60:63], s71 offen offset:32")
        nb1 = a.newlabel("nb"); nb2 = a.newlabel("nb")
        a("s_cmp_lg_u32 s70, 0")
        a(f"s_cbranch_scc1 {nb1}")
        loads(A+20, "s69")
        a.label(nb1)
        a("s_waitcnt vmcnt(0)")
        gstamp(a, "k_gu_kernel", 20)
        compute(A, "s68", A+40)
        a("s_cmp_lg_u32 s70, 0")
        a(f"s_cbranch_scc1 {nb2}")
        a("s_nop 4")
        compute(A+20, "s69", A+40)
        a.label(nb2)
        gstamp(a, "k_gu_kernel", 21)
        a("s_waitcnt vmcnt(0)")
        gstamp(a, "k_gu_kernel", 22)
        a("s_barrier")
        gstamp(a, "k_gu_kernel", 23)
        nw = a.newlabel("nw"); lp = a.newlabel("lp"); ok = a.newlabel("ok"); go = a.newlabel("go"); fl = a.newlabel("fl")
        a("s_cmp_lg_u32 s28, 0")
        a(f"s_cbranch_scc1 {nw}")
        a("s_lshl_b32 s70, s39, 2")
        a(f"v_mov_b32 {v(tm)}, 1")
        a("s_mov_b64 exec, 1")
        a(f"buffer_atomic_add {v(tm)}, {v(o+3)}, s[92:95], s70 offen sc0 sc1")
        a("s_mov_b64 exec, -1")
        a("s_movk_i32 s69, 0x2000")
        a("s_waitcnt vmcnt(0)")
        a(f"v_readfirstlane_b32 s71, {v(tm)}")
        a("s_nop 3")
        a("s_add_u32 s71, s71, 1")
        gstamp(a, "k_gu_kernel", 24)
        a.label(lp)
        a(f"s_cmp_ge_u32 s71, {NEED2}")
        a(f"s_cbranch_scc1 {ok}")
        a(f"buffer_load_dword {v(tm)}, {v(o+3)}, s[92:95], s70 offen sc0 sc1")
        a("s_waitcnt vmcnt(0)")
        a(f"v_readfirstlane_b32 s71, {v(tm)}")
        a("s_sub_u32 s69, s69, 1")
        a("s_cmp_lg_u32 s69, 0")
        a(f"s_cbranch_scc1 {lp}")
        a.label(ok)
        a(f"v_mov_b32 {v(tm)}, s69")
        a(f"v_mov_b32 {v(tm+1)}, {hex(147456)}")
        a(f"ds_write_b32 {v(tm+1)}, {v(tm)}")
        a("s_waitcnt lgkmcnt(0)")
        a.label(nw)
        a("s_barrier")
        a(f"v_mov_b32 {v(tm+1)}, {hex(147456)}")
        a(f"ds_read_b32 {v(tm)}, {v(tm+1)}")
        a("s_waitcnt lgkmcnt(0)")
        a(f"v_readfirstlane_b32 s69, {v(tm)}")
        a("s_nop 3")
        a("s_cmp_lg_u32 s69, 0")
        a(f"s_cbranch_scc1 {go}")
        a("s_lshl_b32 s68, s28, 14")
        a("s_add_u32 s68, s68, s24")
        a("s_mov_b32 s69, 16")
        a.label(fl)
        loads(A, "s68")
        a("s_waitcnt vmcnt(0)")
        compute(A, "s68", A+40)
        a("s_waitcnt vmcnt(0)")
        a("s_add_u32 s68, s68, 1024")
        a("s_sub_u32 s69, s69, 1")
        a("s_cmp_lg_u32 s69, 0")
        a(f"s_cbranch_scc1 {fl}")
        a("s_barrier")
        a.label(go)
    def epi(a, c):
        acc, TM, TN, T = c['acc'], c['TM'], c['TN'], c['T']
        vo = c['alloc'](); tmp = c['fr'][0]
        a(f"v_lshlrev_b32 {v(vo)}, 5, {v(T)}")
        a(f"v_lshl_add_u32 {v(vo)}, {v(T+1)}, 4, {v(vo)}")
        a(f"s_mul_i32 s34, s39, {128*3584}")
        a(f"s_mul_i32 s54, s30, {TM*32*3584}")
        a("s_add_u32 s34, s34, s54")
        a("s_lshl_b32 s54, s38, 13")
        a("s_add_u32 s34, s34, s54")
        a("s_lshl_b32 s54, s29, 11")
        a("s_add_u32 s34, s34, s54")
        for mb in range(TM):
            g = acc + mb*16
            u = acc + (TM+mb)*16
            for i in range(16):
                a(f"v_max_f32 {v(g+i)}, 0, {v(g+i)}")
                a(f"v_mul_f32 {v(g+i)}, {v(g+i)}, {v(u+i)}")
            a(f"s_add_u32 s54, s34, {mb*32*3584}")
            store_bf16_perm(a, g, tmp + 8*mb, vo, 16, "s54", 0, gs=1024)
    P = dict(NW=8, WM=2, WN=4, TM=2, TN=2, NST=3, KT=8, lda=1024, ldb=3584, nsub=2, perm=False, nwg=224,
             setup=setup, epilogue=epi)
    return gemm_A(a, "k_gu_kernel", P)

def gen_down(a):
    name = "k_down_kernel"
    NST, KT = 2, 7
    lda, ldb = 3584, 1024
    kernel_begin(a, name)
    end = a.newlabel("end")
    a("s_cmp_ge_u32 s2, 256")
    a(f"s_cbranch_scc1 {end}")
    load_ptr(a, 40, 'wd'); load_ptr(a, 42, 'out'); load_ptr(a, 46, 'ws')
    a("s_and_b32 s35, s2, 7")
    a("s_lshr_b32 s36, s2, 3")
    a("s_lshl_b32 s39, s35, 2")
    a("s_lshr_b32 s37, s36, 3")
    a("s_add_u32 s39, s39, s37")
    a("s_and_b32 s38, s36, 7")
    a("v_and_b32 v1, 63, v0")
    a("v_lshrrev_b32 v2, 6, v0")
    a("s_nop 0")
    a("v_readfirstlane_b32 s28, v2")
    T = 4
    vXd, vWd = 16, 17
    a("s_mov_b32 s29, 0")
    xdma_voff(a, 1, "s29", vXd, 10, lda, True)
    a(f"v_xor_b32 v18, 0x800, {v(vXd)}")
    wdma_voff(a, 1, "s29", vWd, 10, ldb, 64)
    a(f"s_mul_i32 s24, s39, {64*lda}")
    a("s_lshl_b32 s54, s28, 12")
    a("s_add_u32 s24, s24, s54")
    a("s_lshl_b32 s25, s28, 16")
    a("s_lshl_b32 s54, s38, 7")
    a("s_add_u32 s25, s25, s54")
    a("s_lshl_b32 s33, s28, 15")
    a("s_waitcnt lgkmcnt(0)")
    make_srd(a, 4, 46, WS_ACT, 2048*3584)
    make_srd(a, 8, 40, 0, 1792*1024)
    xa = 20
    wa = [24, 25]
    def late():
        make_srd(a, 16, 42, 0, 2048*1024)
        make_srd(a, 12, 46, WS_X1, 2048*2048)
        make_srd(a, 20, 46, WS_MOD, 12288)
        lane_decomp(a, 1, T)
        xfrag_addrs(a, T, xa, 128, 0, "s33")
        for nb in range(2):
            wfrag_addr(a, T, wa[nb], 10, 128, True, nb, 8192)
            a(f"v_add_u32 {v(wa[nb])}, s33, {v(wa[nb])}")
    fr = [28, 44]
    acc = 60
    def dma(t):
        st = t % NST
        out = []
        for j in range(8):
            out.append([f"s_add_u32 m0, s33, {st*16384 + j*1024}",
                        f"s_add_u32 s34, s24, {t*16384 + (j>>2)*32*lda + (j&3)*256}",
                        f"buffer_load_dwordx4 {v(vXd if j%2==0 else 18)}, s[4:7], s34 offen lds"])
        for j in range(8):
            out.append([f"s_add_u32 m0, s33, {st*16384 + 8192 + j*1024}",
                        f"s_add_u32 s34, s25, {t*256*ldb + j*8*ldb}",
                        f"buffer_load_dwordx4 {v(vWd)}, s[8:11], s34 offen lds"])
        return out
    def reads(t, ks, f):
        st = t % NST
        for mb in range(2):
            a(f"ds_read_b128 {v(f+4*mb,4)}, {v(xa+ks)} offset:{st*16384+mb*4096}")
        for nb in range(2):
            for half in range(2):
                a(f"ds_read_b64_tr_b16 {v(f+8+4*nb+2*half,2)}, {v(wa[nb])} offset:{st*16384+16*ks*128+half*8*128}")
    for t in range(2):
        for g in dma(t):
            for i in g: a(i)
    late()
    for t in range(KT):
        a(f"s_waitcnt vmcnt({16 if t < KT-1 else 0})")
        reads(t, 0, fr[0])
        for ks in range(4):
            a("s_waitcnt lgkmcnt(0)")
            if ks < 3: reads(t, ks+1, fr[(ks+1)&1])
            f = fr[ks&1]
            for nb in range(2):
                for mb in range(2):
                    c = acc + (nb*2+mb)*16
                    src = "0" if (t == 0 and ks == 0) else v(c,16)
                    a(f"{MF} {v(c,16)}, {v(f+8+4*nb,4)}, {v(f+4*mb,4)}, {src}")
        if t+2 < KT:
            for g in dma(t+2):
                for i in g: a(i)
    a("s_nop 15")
    a("s_barrier")
    a("v_lshlrev_b32 v26, 4, v1")
    a("s_lshl_b32 s54, s28, 14")
    a("v_add_u32 v27, s54, v26")
    for tl in range(4):
        for q in range(4):
            a(f"ds_write_b128 v27, {v(acc+tl*16+4*q,4)} offset:{tl*4096+q*1024}")
    a("s_waitcnt lgkmcnt(0)")
    a("s_barrier")
    a("s_lshl_b32 s54, s28, 12")
    a("v_add_u32 v27, s54, v26")
    a("s_lshr_b32 s29, s28, 1")
    a("s_and_b32 s30, s28, 1")
    a("s_lshl_b32 s54, s39, 6")
    a("s_lshl_b32 s55, s30, 5")
    a("s_add_u32 s54, s54, s55")
    a("s_lshl_b32 s55, s38, 6")
    a("s_lshl_b32 s56, s29, 5")
    a("s_add_u32 s55, s55, s56")
    a("s_lshl_b32 s56, s54, 11")
    a("s_lshl_b32 s57, s55, 2")
    a("s_add_u32 s56, s56, s57")
    a("s_add_u32 s57, s57, 10240")
    a("s_lshr_b32 s58, s56, 1")
    a(f"v_lshlrev_b32 v10, 11, {v(T)}")
    a(f"v_lshl_add_u32 v10, {v(T+1)}, 4, v10")
    a(f"v_lshlrev_b32 v11, 4, {v(T+1)}")
    a("v_lshrrev_b32 v12, 1, v10")
    for q in range(4):
        a(f"buffer_load_dwordx4 {v(28+4*q,4)}, v10, s[12:15], s56 offen offset:{q*32}")
        a(f"buffer_load_dwordx4 {v(44+4*q,4)}, v11, s[20:23], s57 offen offset:{q*32}")
    for w in range(4):
        for q in range(4):
            a(f"ds_read_b128 {v(acc+w*16+4*q,4)}, v27 offset:{w*16384+q*1024}")
        if w == 2: a("s_waitcnt lgkmcnt(0)")
    a("s_waitcnt lgkmcnt(0)")
    for w in range(1, 4):
        for i in range(16):
            a(f"v_add_f32 {v(acc+i)}, {v(acc+i)}, {v(acc+16*w+i)}")
    a("s_waitcnt vmcnt(0)")
    for i in range(16):
        a(f"v_fmac_f32 {v(28+i)}, {v(acc+i)}, {v(44+i)}")
    for q in range(4):
        a(f"v_cvt_pk_bf16_f32 {v(acc+16+2*q)}, {v(28+4*q)}, {v(28+4*q+1)}")
        a(f"v_cvt_pk_bf16_f32 {v(acc+16+2*q+1)}, {v(28+4*q+2)}, {v(28+4*q+3)}")
        a(f"buffer_store_dwordx2 {v(acc+16+2*q,2)}, v12, s[16:19], s58 offen offset:{q*16}")
    a.label(end)
    a("s_endpgm")
    return name, acc+64, (256, 256, 131072)
```

```python
from common import *

def gen_mod(a):
    name = "k_mod_kernel"
    kernel_begin(a, name)
    a("s_cmp_ge_u32 s2, 48")
    a(f"s_cbranch_scc1 .Lmod_end")
    load_ptr(a, 4, 'c'); load_ptr(a, 6, 'wmod'); load_ptr(a, 8, 'ws')
    a("v_and_b32 v1, 7, v0")
    a("v_lshrrev_b32 v2, 3, v0")
    a("s_waitcnt lgkmcnt(0)")
    make_srd(a, 12, 4, 0, 1024)
    make_srd(a, 16, 6, 0, 512*6144)
    make_srd(a, 20, 8, WS_MOD, 12288)
    a("v_lshlrev_b32 v3, 5, v2")
    a("buffer_load_dwordx4 v[8:11], v3, s[12:15], 0 offen")
    a("buffer_load_dwordx4 v[12:15], v3, s[12:15], 0 offen offset:16")
    a("s_mov_b32 s24, 98304")
    a("v_mul_lo_u32 v4, v2, s24")
    a("v_lshl_add_u32 v4, v1, 4, v4")
    a("s_lshl_b32 s25, s2, 7")
    for j in range(16):
        a(f"s_add_u32 s26, s25, {j*6144}")
        a(f"buffer_load_dwordx4 {v(48+4*j,4)}, v4, s[16:19], s26 offen")
    a("s_waitcnt vmcnt(16)")
    unpack8(a, 8, 16); unpack8(a, 12, 24)
    for j in range(16):
        a(f"v_mul_f32 v5, 0xbfb8aa3b, {v(16+j)}")
        a("v_exp_f32 v5, v5")
        a("s_nop 0")
        a("v_add_f32 v5, 1.0, v5")
        a("v_rcp_f32 v5, v5")
        a("s_nop 0")
        a(f"v_mul_f32 v5, v5, {v(16+j)}")
        round_bf16(a, 16+j, 5)
    for i in range(8):
        a(f"v_mov_b32 {v(32+i)}, 0")
    for j in range(16):
        a(f"s_waitcnt vmcnt({15-j})")
        unpack8(a, 48+4*j, 40)
        for i in range(8):
            a(f"v_fmac_f32 {v(32+i)}, {v(40+i)}, {v(16+j)}")
    a("v_lshlrev_b32 v5, 8, v2")
    a("v_lshl_add_u32 v5, v1, 5, v5")
    a("ds_write_b128 v5, v[32:35]")
    a("ds_write_b128 v5, v[36:39] offset:16")
    a("s_waitcnt lgkmcnt(0)")
    a("s_barrier")
    a("v_cmp_gt_u32 vcc, 64, v0")
    a("s_and_saveexec_b64 s[28:29], vcc")
    a("s_cbranch_execz .Lmod_end")
    a("v_lshlrev_b32 v5, 2, v0")
    for j in range(32):
        a(f"ds_read_b32 {v(48+j)}, v5 offset:{j*256}")
        if j == 14: a("s_waitcnt lgkmcnt(0)")
        if j == 29: a("s_waitcnt lgkmcnt(0)")
    a("s_waitcnt lgkmcnt(0)")
    a("v_add_f32 v6, v48, v49")
    for j in range(2, 32):
        a(f"v_add_f32 v6, v6, {v(48+j)}")
    round_bf16(a, 6, 6)
    a("s_lshr_b32 s24, s2, 3")
    a("s_cmp_eq_u32 s24, 1")
    a("s_cselect_b32 s25, 1.0, 0")
    a("s_cmp_eq_u32 s24, 4")
    a("s_cselect_b32 s25, 1.0, s25")
    a("v_add_f32 v6, s25, v6")
    round_bf16(a, 6, 6)
    a("s_lshl_b32 s24, s2, 8")
    a("buffer_store_dword v6, v5, s[20:23], s24 offen")
    a.label(".Lmod_end")
    a("s_endpgm")
    return name, 112, (48, 256, 8192)

def gen_ln2(a, nsplit):
    name = "k_ln2_kernel"
    kernel_begin(a, name)
    a("s_cmp_ge_u32 s2, 512")
    a("s_cbranch_scc1 .Lln2_end")
    load_ptr(a, 4, 'x'); load_ptr(a, 6, 'ws')
    a("v_and_b32 v1, 63, v0")
    a("v_lshrrev_b32 v2, 6, v0")
    a("s_lshl_b32 s3, s2, 2")
    a("v_add_u32 v2, s3, v2")
    a("s_waitcnt lgkmcnt(0)")
    make_srd(a, 8, 4, 0, 2048*1024)
    make_srd(a, 12, 6, WS_MOD, 12288)
    make_srd(a, 16, 6, WS_PART, nsplit*2048*2048)
    make_srd(a, 20, 6, WS_X1, 2048*2048)
    make_srd(a, 24, 6, WS_H2, 2048*1024)
    a("v_lshlrev_b32 v3, 5, v1")
    a("v_lshl_add_u32 v4, v2, 11, v3")
    a("v_lshrrev_b32 v5, 1, v4")
    a("buffer_load_dwordx4 v[8:11], v5, s[8:11], 0 offen")
    a("s_mov_b32 s28, 4096")
    a("buffer_load_dwordx4 v[12:15], v3, s[12:15], s28 offen")
    a("buffer_load_dwordx4 v[16:19], v3, s[12:15], s28 offen offset:16")
    for p in range(nsplit):
        a(f"s_mov_b32 s29, {p*2048*2048}")
        a(f"buffer_load_dwordx4 {v(32+8*p,4)}, v4, s[16:19], s29 offen")
        a(f"buffer_load_dwordx4 {v(36+8*p,4)}, v4, s[16:19], s29 offen offset:16")
    a("s_waitcnt vmcnt(0)")
    unpack8(a, 8, 20)
    for p in range(1, nsplit):
        for i in range(8):
            a(f"v_add_f32 {v(32+i)}, {v(32+i)}, {v(32+8*p+i)}")
    for i in range(8):
        a(f"v_fmac_f32 {v(20+i)}, {v(32+i)}, {v(12+i)}")
    a("buffer_store_dwordx4 v[20:23], v4, s[20:23], 0 offen")
    a("buffer_store_dwordx4 v[24:27], v4, s[20:23], 0 offen offset:16")
    for i in range(8):
        a(f"v_mov_b32 {v(72+i)}, {v(20+i)}")
    ln_row(a, 72, 80, 12, 3, 1536, 2048, 8)
    a("buffer_store_dwordx4 v[8:11], v5, s[24:27], 0 offen")
    a.label(".Lln2_end")
    a("s_endpgm")
    return name, 104, (512, 256, 0)

def gen_ln2b(a, NS=8):
    name = "k_ln2_kernel"
    kernel_begin(a, name)
    a("s_cmp_ge_u32 s2, 512")
    a("s_cbranch_scc1 .Lln2_end")
    load_ptr(a, 4, 'x'); load_ptr(a, 6, 'ws')
    a("v_and_b32 v1, 63, v0")
    a("v_lshrrev_b32 v2, 6, v0")
    a("s_lshl_b32 s3, s2, 12")
    a("v_lshlrev_b32 v2, 10, v2")
    import os
    PB = int(os.environ.get('PB', '1'))
    if PB:
        a("v_lshrrev_b32 v3, 1, v1")
        a("v_lshlrev_b32 v3, 10, v3")
        a("v_and_b32 v4, 1, v1")
        a("v_lshl_add_u32 v3, v4, 4, v3")
        a("v_lshrrev_b32 v4, 5, v2")
        a("v_add_u32 v3, v3, v4")
        a("s_lshr_b32 s31, s2, 3")
        a("s_lshl_b32 s31, s31, 15")
        a("s_and_b32 s29, s2, 7")
        a("s_lshl_b32 s29, s29, 7")
        a("s_add_u32 s31, s31, s29")
    else:
        a("v_lshl_add_u32 v3, v1, 4, v2")
        a("s_mov_b32 s31, s3")
    a("v_and_b32 v4, 1, v1")
    a("v_lshlrev_b32 v4, 3, v4")
    a("v_and_b32 v5, 62, v1")
    a("v_lshl_add_u32 v4, v5, 4, v4")
    a("v_lshlrev_b32 v5, 1, v4")
    a("v_add_u32 v4, v4, v2")
    a("v_lshlrev_b32 v6, 1, v4")
    a("s_waitcnt lgkmcnt(0)")
    make_srd(a, 16, 6, WS_PART, NS*2048*1024)
    for p in range(NS):
        if p: a(f"s_add_u32 s29, s31, {p*2048*1024}")
        a(f"buffer_load_dwordx4 {v(76+4*p,4)}, v3, s[16:19], {'s29' if p else 's31'} offen")
    make_srd(a, 8, 4, 0, 2048*1024)
    a("buffer_load_dwordx2 v[8:9], v4, s[8:11], s3 offen")
    a("buffer_load_dwordx2 v[10:11], v4, s[8:11], s3 offen offset:16")
    make_srd(a, 12, 6, WS_MOD, 12288)
    MV = 32
    for j, col in enumerate((1024, 1536, 2048)):
        a(f"s_movk_i32 s28, {col*4}")
        a(f"buffer_load_dwordx4 {v(MV+8*j,4)}, v5, s[12:15], s28 offen")
        a(f"buffer_load_dwordx4 {v(MV+8*j+4,4)}, v5, s[12:15], s28 offen offset:32")
    make_srd(a, 20, 6, WS_X1, 2048*2048)
    make_srd(a, 24, 6, WS_H2, 2048*1024)
    a("s_lshl_b32 s30, s3, 1")
    X, S, tm = 56, 64, 72
    for i in range(8): a(f"v_mov_b32 {v(S+i)}, 0")
    for p in range(NS):
        a(f"s_waitcnt vmcnt({7+NS-p})")
        for i in range(8):
            a(f"v_fma_mix_f32 {v(S+i)}, {v(76+4*p+i//2)}, 1.0, {v(S+i)} op_sel:[{i&1},0,0] op_sel_hi:[1,0,0]")
    a("s_waitcnt vmcnt(4)")
    unpack8(a, 8, X)
    for i in range(8): a(f"v_fmac_f32 {v(X+i)}, {v(S+i)}, {v(MV+i)}")
    a(f"buffer_store_dwordx4 {v(X,4)}, v6, s[20:23], s30 offen")
    a(f"buffer_store_dwordx4 {v(X+4,4)}, v6, s[20:23], s30 offen offset:32")
    sm, tt, va = tm, tm+1, tm+2
    a(f"v_add_f32 {v(sm)}, {v(X)}, {v(X+1)}")
    for i in range(2, 8): a(f"v_add_f32 {v(sm)}, {v(sm)}, {v(X+i)}")
    wave_sum(a, sm, tt)
    a(f"v_mul_f32 {v(sm)}, 0x3b000000, {v(sm)}")
    for i in range(8): a(f"v_sub_f32 {v(S+i)}, {v(X+i)}, {v(sm)}")
    a(f"v_mul_f32 {v(va)}, {v(S)}, {v(S)}")
    for i in range(1, 8): a(f"v_fmac_f32 {v(va)}, {v(S+i)}, {v(S+i)}")
    wave_sum(a, va, tt)
    a(f"v_mov_b32 {v(tt)}, 0x3727c5ac")
    a(f"v_fmac_f32 {v(tt)}, 0x3b000000, {v(va)}")
    a(f"v_rsq_f32 {v(tt)}, {v(tt)}")
    a("s_waitcnt vmcnt(2)")
    for i in range(8): a(f"v_mul_f32 {v(S+i)}, {v(S+i)}, {v(tt)}")
    for i in range(8): a(f"v_fma_f32 {v(S+i)}, {v(S+i)}, {v(MV+16+i)}, {v(MV+8+i)}")
    for i in range(4): a(f"v_cvt_pk_bf16_f32 {v(12+i)}, {v(S+2*i)}, {v(S+2*i+1)}")
    a("buffer_store_dwordx2 v[12:13], v4, s[24:27], s3 offen")
    a("buffer_store_dwordx2 v[14:15], v4, s[24:27], s3 offen offset:16")
    a.label(".Lln2_end")
    a("s_endpgm")
    return name, 76+4*NS, (512, 256, 0)
```

```python
from common import *
from gemm import *
from kernels import store_bf16_perm
import math, struct

def f2u(x): return struct.unpack('<I', struct.pack('<f', x))[0]
CSCF = math.log2(math.e) / math.sqrt(128.0)
CSC = f2u(CSCF)
NEG = f2u(-1e30)
THR = f2u(8.0)

import os
PM = int(os.environ.get('PM', 1)); PS = int(os.environ.get('PS', 0))
def gen_attn(a, D=6, dbg=False):
    name = "k_attn_kernel"
    def stamp(k, adj=0):
        if not dbg: return
        a("s_memtime s[80:81]")
        a("s_mul_i32 s82, s54, 3")
        a(f"s_add_i32 m0, s82, {k%3 - 3*adj}")
        a("s_waitcnt lgkmcnt(0)")
        a(f"v_writelane_b32 v{(3,9)[k//3]}, s80, m0")
    def stampx(idx):
        if not dbg: return
        a("s_memtime s[80:81]")
        a("s_waitcnt lgkmcnt(0)")
        a(f"v_writelane_b32 v3, s80, {idx}")
    T = 4
    vXd, vWd, vKd, vVd = 16, 17, 18, 19
    KA_, VA_ = 20, 28
    vM, vL, vMC, vD, vMX, vT, vAL, vR4 = 32, 34, 36, 38, 39, 40, 42, 44
    QF, S, P, O, FR, NM = 48, 80, 112, 128, 192, 240
    XA_ = [S, S+8, S+16]
    MS = [66, 68, 72, 74, 76, 78, 84, 86, 88, 92, 94, 96, 98, 100, 40, 42]
    QS = 131072
    QST = 49152
    kernel_begin(a, name)
    end = a.newlabel("end")
    a("s_cmp_ge_u32 s2, 256")
    a(f"s_cbranch_scc1 {end}")
    stampx(51)
    load_ptr(a, 40, 'wq'); load_ptr(a, 46, 'ws')
    a("s_and_b32 s35, s2, 7")
    a("s_lshr_b32 s36, s2, 3")
    a("s_and_b32 s37, s36, 3")
    a("s_lshl_b32 s38, s35, 2")
    a("s_add_u32 s37, s37, s38")
    a("s_lshr_b32 s38, s36, 2")
    a("s_sub_u32 s39, 15, s38")
    a("v_and_b32 v1, 63, v0")
    a("v_lshrrev_b32 v2, 6, v0")
    a("s_nop 0")
    a("v_readfirstlane_b32 s28, v2")
    a("s_nop 2")
    xdma_voff(a, 1, "s28", vXd, 10, 1024)
    wdma_voff(a, 1, "s28", vWd, 10, 8192, 128)
    a("s_lshl_b32 s33, s28, 10")
    a("s_lshl_b32 s24, s38, 17")
    a("s_lshl_b32 s25, s39, 17")
    a("s_lshl_b32 s26, s37, 8")
    a("s_waitcnt lgkmcnt(0)")
    make_srd(a, 4, 46, WS_H, 2048*1024)
    make_srd(a, 8, 40, 0, 512*8192)
    def qdma(t):
        st = (t % 3)*QST
        out = []
        for jj in range(4):
            out.append([f"s_add_u32 m0, s33, {st + jj*8192}",
                        f"s_add_u32 s34, s{24 + (jj>>1)}, {t*128 + (jj&1)*64*1024}",
                        f"buffer_load_dwordx4 {v(vXd)}, s[4:7], s34 offen lds"])
        for jj in range(2):
            out.append([f"s_add_u32 m0, s33, {st + 32768 + jj*8192}",
                        f"s_add_u32 s34, s26, {t*64*8192 + jj*32*8192}",
                        f"buffer_load_dwordx4 {v(vWd)}, s[8:11], s34 offen lds"])
        return out
    for g in qdma(0):
        for i in g: a(i)
    a("s_lshr_b32 s29, s28, 2")
    a("s_and_b32 s30, s28, 3")
    a("s_lshl_b32 s50, s37, 19")
    a("s_add_u32 s52, s46, s50")
    a("s_addc_u32 s53, s47, 0")
    make_srd(a, 12, 52, WS_K, 2048*256)
    make_srd(a, 16, 52, WS_V, 2048*256)
    make_srd(a, 20, 46, WS_CTX, 2048*8192)
    lane_decomp(a, 1, T)
    wdma_voff(a, 1, "s30", vVd, 10, 256, 128)
    a(f"v_lshrrev_b32 {v(vKd)}, 4, v1")
    a("s_lshl_b32 s50, s30, 2")
    a(f"v_add_u32 {v(vKd)}, s50, {v(vKd)}")
    a(f"v_xor_b32 v10, {v(vKd)}, v1")
    a("v_and_b32 v10, 15, v10")
    a(f"v_lshlrev_b32 {v(vKd)}, 8, {v(vKd)}")
    a(f"v_lshl_add_u32 {v(vKd)}, v10, 4, {v(vKd)}")
    for r_ in (vKd, vVd):
        a(f"v_bfe_u32 v10, {v(r_)}, 5, 3")
        a(f"v_lshrrev_b32 v11, 8, {v(r_)}")
        a(f"v_and_b32 {v(r_)}, 16, {v(r_)}")
        a(f"v_lshl_add_u32 {v(r_)}, v10, 10, {v(r_)}")
        a(f"v_lshl_add_u32 {v(r_)}, v11, 5, {v(r_)}")
    a(f"v_and_b32 v10, 15, {v(T)}")
    a(f"v_xor_b32 v10, v10, {v(T+1)}")
    a("v_lshlrev_b32 v10, 4, v10")
    a(f"v_lshl_add_u32 v10, {v(T)}, 8, v10")
    a("s_lshl_b32 s50, s29, 16")
    a("s_add_u32 s51, s50, 32768")
    a(f"v_add_u32 {v(KA_)}, s51, v10")
    for i in range(1, 8):
        a(f"v_xor_b32 {v(KA_+i)}, {i<<5}, {v(KA_)}")
    for db in range(4):
        wfrag_addr(a, T, VA_+db, 10, 256, True, db, 0)
        a(f"v_add_u32 {v(VA_+db)}, s50, {v(VA_+db)}")
    a("s_lshl_b32 s51, s30, 10")
    a("s_add_u32 s31, s50, s51")
    a("s_add_u32 s32, s31, 32768")
    a("s_lshl_b32 s50, s28, 12")
    xfrag_addrs(a, T, XA_[0], 128, 0, "s50")
    for nb in range(4):
        wfrag_addr(a, T, XA_[0]+4+nb, 10, 256, False, nb, 32768)
    for st in (1, 2):
        for i in range(8):
            a(f"v_add_u32 {v(XA_[st]+i)}, {hex(st*QST)}, {v(XA_[0]+i)}")
    for g in qdma(1):
        for i in g: a(i)
    a("s_lshl_b32 s50, s38, 1")
    a("s_add_u32 s57, s50, 2")
    a("s_sub_u32 s55, 15, s50")
    a("s_cmp_eq_u32 s29, 0")
    a("s_cselect_b32 s57, s57, 99")
    a("s_cselect_b32 s55, 0, s55")
    a("s_cselect_b32 s59, s38, s39")
    a("s_lshl_b32 s59, s59, 7")
    a("s_lshl_b32 s50, s30, 5")
    a("s_add_u32 s59, s59, s50")
    a("s_mov_b32 s54, 0")
    a("s_mov_b32 s64, 0")
    for r in range(16):
        c_ = (r&3) + 8*(r>>2)
        a(f"s_lshl_b32 s{MS[r]}, -1, {c_}")
        a(f"s_lshl_b32 s{MS[r]+1}, -1, {c_+4}")
    a(f"s_mov_b32 s60, {hex(CSC)}")
    a(f"s_mov_b32 s61, {hex(CSC)}")
    a(f"s_mov_b32 s58, {hex(NEG)}")
    a(f"s_mov_b32 s70, {hex(THR)}")
    a(f"v_lshlrev_b32 v10, 2, {v(T+1)}")
    a(f"v_sub_u32 {v(vR4)}, {v(T)}, v10")
    def kdma(stile, sl):
        return [[f"s_add_u32 m0, s32, {jj*4096 + sl*16384}",
                 f"s_add_u32 s34, {stile}, {(jj>>1)*8192 + (jj&1)*512}",
                 f"buffer_load_dwordx4 {v(vKd)}, s[12:15], s34 offen lds"] for jj in range(4)]
    def vdma(stile, sl):
        return [[f"s_add_u32 m0, s31, {jj*4096 + sl*16384}",
                 f"s_add_u32 s34, {stile}, {(jj>>1)*8192 + (jj&1)*512}",
                 f"buffer_load_dwordx4 {v(vVd)}, s[16:19], s34 offen lds"] for jj in range(4)]
    def qreads(t, ks, f):
        xa = XA_[t % 3]
        a(f"ds_read_b128 {v(f,4)}, {v(xa+ks)}")
        for nb in range(4):
            for half in range(2):
                a(f"ds_read_b64_tr_b16 {v(f+4+4*nb+2*half,2)}, {v(xa+4+nb)} offset:{16*ks*256+half*1024}")
    fr = [FR, FR+20]
    a("s_lshl_b32 s27, s55, 14")
    a("s_waitcnt vmcnt(6)")
    a("s_barrier")
    qreads(0, 0, fr[0])
    d = qdma(2)
    for t in range(8):
        for ks in range(4):
            a("s_waitcnt lgkmcnt(0)")
            if ks < 3: qreads(t, ks+1, fr[(ks+1)&1])
            elif t < 7:
                a(f"s_waitcnt vmcnt({6 if t < 6 else 0})")
                a("s_barrier")
                stampx(52+t)
                qreads(t+1, 0, fr[0])
                d = qdma(t+3) if t < 5 else (kdma("s27", 0) if t == 6 else [])
            f = fr[ks&1]
            for nb in range(4):
                c = O + nb*16
                src = "0" if (t == 0 and ks == 0) else v(c,16)
                a(f"{MF} {v(c,16)}, {v(f+4+4*nb,4)}, {v(f,4)}, {src}")
                if d:
                    for i in d.pop(0): a(i)
    APF = int(os.environ.get('APF', '4'))
    PRI = os.environ.get('PRI', '')
    TS = [int(x) for x in os.environ.get('TS', '5,8,8,11').split(',')]
    TR = [(44, 4 << 20, 36, 65, 0), (8, 512*1792*2, 38, 91, 0), (10, 512*1792*2, 38, 91, 0), (48, 512*1792*2, 38, 91, 0)]
    if APF == 4:
        a("s_load_dwordx4 s[8:11], s[0:1], 56")
        a("s_load_dwordx2 s[48:49], s[0:1], 72")
        a("v_and_b32 v38, 7, v1")
        a("v_min_u32 v38, 6, v38")
        a("v_lshlrev_b32 v38, 7, v38")
    AST = int(os.environ.get('AST', '8'))
    if APF >= 2:
        a("s_load_dwordx2 s[44:45], s[0:1], 40")
        a("v_and_b32 v36, 15, v1")
        a("v_lshlrev_b32 v36, 7, v36")
    if APF == 1:
        a("s_load_dwordx2 s[44:45], s[0:1], 40")
        a("s_load_dwordx4 s[8:11], s[0:1], 56")
        a("s_load_dwordx2 s[48:49], s[0:1], 72")
        a("v_lshrrev_b32 v36, 3, v1")
        a("v_lshlrev_b32 v36, 7, v36")
    pf = [["buffer_load_dword v37, v36, s[4:7], s65 offen",
           "s_add_u32 s65, s65, 1024",
           "s_min_u32 s65, s65, s91"]] if APF == 1 else []
    a("v_lshlrev_b32 v11, 4, v1")
    a("s_lshl_b32 s50, s30, 13")
    a(f"s_add_u32 s50, s50, {QS}")
    a("v_add_u32 v11, s50, v11")
    a(f"v_mov_b32 {v(vL)}, 0")
    a(f"v_mov_b32 {v(vL+1)}, 0")
    for i in range(16): a(f"v_mov_b32 {v(NM+i)}, 0")
    a("s_mov_b32 s70, s58")
    a("s_mov_b32 s71, 0")
    for i in range(32):
        a(f"v_mul_f32 {v(O+2*i)}, s60, {v(O+2*i)}")
        a(f"v_mul_f32 {v(O+2*i+1)}, s60, {v(O+2*i+1)}")
        a(f"v_cvt_pk_bf16_f32 {v(QF+i)}, {v(O+2*i)}, {v(O+2*i+1)}")
    ng1 = a.newlabel("ng1")
    a("s_cmp_eq_u32 s29, 0")
    a(f"s_cbranch_scc1 {ng1}")
    for i in range(8):
        a(f"ds_write_b128 v11, {v(QF+4*i,4)} offset:{i*1024}")
    a("s_waitcnt vmcnt(0) lgkmcnt(0)")
    a("s_barrier")
    a.label(ng1)
    a("s_waitcnt vmcnt(0) lgkmcnt(0)")
    a("s_barrier")
    vorder = [(ks, db) for ks in range(4) for db in range(4)]
    korder = [(kb, ks) for ks in range(8) for kb in range(2)]
    def fload(i, vs, ksl):
        sl = FR + 4*(i % 12)
        if i < 16:
            ks, db = vorder[i]
            for half in range(2):
                a(f"ds_read_b64_tr_b16 {v(sl+2*half,2)}, {v(VA_+db)} offset:{ks*4096+half*2048+vs*16384}")
        else:
            kb, ks = korder[i-16]
            a(f"ds_read_b128 {v(sl,4)}, {v(KA_+ks)} offset:{kb*8192+ksl*16384}")
    def nin(i): return 2 if i < 16 else 1
    def mfma(i, z=False):
        sl = FR + 4*(i % 12)
        if i < 16:
            ks, db = vorder[i]
            c = O + db*16
            a(f"{MF} {v(c,16)}, {v(sl,4)}, {v(P+4*ks,4)}, {'0' if z else v(c,16)}")
        else:
            kb, ks = korder[i-16]
            c = S + kb*16
            src = v(NM,16) if ks == 0 else v(c,16)
            a(f"{MF} {v(c,16)}, {v(sl,4)}, {v(QF+4*ks,4)}, {src}")
    def tiles():
        a("s_lshl_b32 s27, s55, 14")
        a("s_add_u32 s56, s55, 1")
        a("s_add_u32 s50, s54, 1")
        a("s_cmp_eq_u32 s50, s57")
        a("s_cselect_b32 s56, 0, s56")
        a("s_lshl_b32 s62, s56, 14")
    loop = a.newlabel("loop"); qk = a.newlabel("qk")
    stampx(60)
    tiles()
    for i in range(16, 16+D): fload(i, 0, 0)
    if APF >= 2:
        make_srd(a, 4, 44, 0, 4 << 20)
        a("s_lshl_b32 s65, s2, 3")
        a("s_add_u32 s65, s65, s28")
        a("s_mul_i32 s91, s65, 896")
        a("s_lshl_b32 s65, s65, 11")
    if APF == 1:
        a("s_lshl_b32 s50, s2, 3")
        a("s_add_u32 s50, s50, s28")
        a("s_cmp_ge_u32 s50, 1184")
        a("s_cselect_b32 s51, 1184, 0")
        a("s_cselect_b32 s24, 4096, 0")
        a("s_sub_u32 s50, s50, s51")
        touch(a, 4, [(44, 4 << 20), (8, 512*1792*2), (10, 512*1792*2), (48, 512*1792*2)], 50, 65)
        a("s_add_u32 s91, s65, 7168")
        a("s_add_u32 s65, s65, s24")
    for g in vdma("s27", 0) + kdma("s62", 1) + pf:
        for i in g: a(i)
    a(f"s_branch {qk}")
    zblocks = []
    a.label(loop)
    for par in range(2):
        stamp(0)
        d = vdma("s27", par) + kdma("s62", 1-par) + pf
        def step(i, z=False, d=d, par=par):
            cnt = sum(nin(k) for k in range(i+1, min(32, i+D)))
            a(f"s_waitcnt lgkmcnt({cnt})")
            mfma(i, z)
            if i + D < 32: fload(i+D, 1-par, par)
            if i < len(d):
                for x in d[i]: a(x)
            if APF == 4 and i == 8:
                for stp in sorted(set(TS)):
                    if (stp & 1) != par: continue
                    sk = a.newlabel("sk")
                    a(f"s_cmp_lg_u32 s54, {stp}")
                    a(f"s_cbranch_scc1 {sk}")
                    for s_, (p, nb, va, so, io) in zip(TS, TR):
                        if s_ != stp: continue
                        make_srd(a, 4, p, 0, nb)
                        a(f"buffer_load_dword v37, {v(va)}, s[4:7], {s(so)} offen offset:{io}")
                    a.label(sk)
            if APF == 3 and i == 8 and par == (AST & 1):
                sk = a.newlabel("sk")
                a(f"s_cmp_lg_u32 s54, {AST}")
                a(f"s_cbranch_scc1 {sk}")
                a("buffer_load_dword v37, v36, s[4:7], s65 offen")
                a.label(sk)
        lz = a.newlabel("lz"); lj = a.newlabel("lj")
        a("s_cmp_lg_u32 s64, 0")
        a(f"s_cbranch_scc1 {lz}")
        for i in range(4): step(i)
        a.label(lj)
        for i in range(4, 32):
            if i == 16 and par == 0: a.label(qk)
            step(i)
        def zblock(step=step, lz=lz, lj=lj):
            a.label(lz)
            for i in range(4): step(i, True)
            a("s_mov_b32 s64, 0")
            a(f"s_branch {lj}")
        zblocks.append(zblock)
        stamp(1)
        a("s_lshl_b32 s50, s55, 6")
        a("s_nop 5")
        a(f"s_waitcnt vmcnt({4 + len(pf)})")
        a("s_barrier")
        stamp(3)
        if PRI: a(f"s_setprio {PRI[0]}")
        nofin = a.newlabel("nofin")
        a("s_cmp_lg_u32 s54, s57")
        a(f"s_cbranch_scc1 {nofin}")
        a(f"v_add_f32 {v(vL)}, {v(vL)}, {v(vL+1)}")
        a(f"v_mov_b32 {v(vT)}, {v(vL)}")
        a("s_nop 1")
        a(f"v_permlane32_swap_b32 {v(vL)}, {v(vT)}")
        a("s_nop 1")
        a(f"v_add_f32 {v(vL)}, {v(vL)}, {v(vT)}")
        a(f"v_rcp_f32 {v(vAL)}, {v(vL)}")
        a("s_lshl_b32 s51, s59, 13")
        a("s_lshl_b32 s63, s26, 5")
        a("s_add_u32 s51, s51, s63")
        a("s_add_u32 s63, s51, 4096")
        a(f"v_lshlrev_b32 v13, 5, {v(T)}")
        a(f"v_lshl_add_u32 v13, {v(T+1)}, 4, v13")
        for db in range(4):
            for i in range(16):
                a(f"v_mul_f32 {v(O+16*db+i)}, {v(O+16*db+i)}, {v(vAL)}")
            store_bf16_perm(a, O+16*db, FR+8*db, 13, 20, "s51" if db < 2 else "s63", (db&1)*2048, gs=1024)
        a("s_mov_b32 s70, s58")
        a("s_mov_b32 s71, 0")
        a("s_lshl_b32 s59, s39, 7")
        a("s_lshl_b32 s51, s30, 5")
        a("s_add_u32 s59, s59, s51")
        a.label(nofin)
        nomask = a.newlabel("nomask")
        a("s_sub_i32 s50, s59, s50")
        a("s_cmp_ge_i32 s50, 63")
        a(f"s_cbranch_scc1 {nomask}")
        a(f"v_mov_b32 {v(vT)}, s58")
        for kb in range(2):
            nx = a.newlabel("nx"); fu = a.newlabel("fu")
            if kb == 0:
                a("s_cmp_gt_i32 s50, 0")
                a(f"s_cbranch_scc1 {nx}")
            a(f"s_cmp_lt_i32 s50, {32*kb}")
            a(f"s_cbranch_scc1 {fu}")
            for r in range(16):
                a(f"v_cndmask_b32 {v(S+16*kb+r)}, {v(vT)}, {v(S+16*kb+r)}, {s(MS[r],2)}")
            a(f"s_branch {nx}")
            a.label(fu)
            for r in range(16):
                a(f"v_mov_b32 {v(S+16*kb+r)}, s58")
            a.label(nx)
        a.label(nomask)
        stamp(2)
        a(f"v_max3_f32 {v(vMX)}, {v(S)}, {v(S+1)}, {v(S+2)}")
        a(f"v_max3_f32 {v(vT)}, {v(S+3)}, {v(S+4)}, {v(S+5)}")
        for i in range(6, 30, 4):
            a(f"v_max3_f32 {v(vMX)}, {v(vMX)}, {v(S+i)}, {v(S+i+1)}")
            a(f"v_max3_f32 {v(vT)}, {v(vT)}, {v(S+i+2)}, {v(S+i+3)}")
        a(f"v_max3_f32 {v(vMX)}, {v(vMX)}, {v(S+30)}, {v(S+31)}")
        a(f"v_max_f32 {v(vMX)}, {v(vMX)}, {v(vT)}")
        a(f"v_cmp_lt_f32 vcc, s70, {v(vMX)}")
        nores = a.newlabel("nores")
        a(f"s_cbranch_vccz {nores}")
        a(f"v_mov_b32 {v(vT)}, {v(vMX)}")
        a("s_min_i32 s51, s70, 0")
        a("s_nop 0")
        a(f"v_permlane32_swap_b32 {v(vMX)}, {v(vT)}")
        a("s_nop 1")
        a(f"v_max3_f32 {v(vMX)}, {v(vMX)}, {v(vT)}, s51")
        a(f"v_exp_f32 {v(vAL)}, -{v(vMX)}")
        for i in range(16): a(f"v_sub_f32 {v(NM+i)}, {v(NM+i)}, {v(vMX)}")
        a(f"v_min_f32 {v(vAL)}, 1.0, {v(vAL)}")
        a(f"v_mul_f32 {v(vAL)}, s71, {v(vAL)}")
        for i in range(32): a(f"v_sub_f32 {v(S+i)}, {v(S+i)}, {v(vMX)}")
        a(f"v_mul_f32 {v(vL)}, {v(vL)}, {v(vAL)}")
        a(f"v_mul_f32 {v(vL+1)}, {v(vL+1)}, {v(vAL)}")
        nomul = a.newlabel("nomul")
        a("s_cmp_eq_u32 s71, 0")
        a("s_cselect_b32 s64, 1, 0")
        a(f"s_cbranch_scc1 {nomul}")
        for i in range(64):
            a(f"v_mul_f32 {v(O+i)}, {v(O+i)}, {v(vAL)}")
        a.label(nomul)
        a(f"s_mov_b32 s70, {hex(THR)}")
        a("s_mov_b32 s71, 1.0")
        a.label(nores)
        stamp(4)
        noq = a.newlabel("noq")
        a("s_add_u32 s54, s54, 1")
        a("s_cmp_lg_u32 s54, s57")
        a(f"s_cbranch_scc1 {noq}")
        for i in range(8):
            a(f"ds_read_b128 {v(QF+4*i,4)}, v11 offset:{i*1024}")
        a("s_waitcnt lgkmcnt(2)")
        a.label(noq)
        a("s_mov_b32 s55, s56")
        for i in range(16):
            a(f"v_exp_f32 {v(S+2*i)}, {v(S+2*i)}")
            a(f"v_exp_f32 {v(S+2*i+1)}, {v(S+2*i+1)}")
            if i >= 1:
                a(f"v_cvt_pk_bf16_f32 {v(P+i-1)}, {v(S+2*i-2)}, {v(S+2*i-1)}")
                a(f"v_add_f32 {v(vL)}, {v(vL)}, {v(S+2*i-2)}")
                a(f"v_add_f32 {v(vL+1)}, {v(vL+1)}, {v(S+2*i-1)}")
            if i == 2: tiles()
            if 8 <= i < 8 + D: fload(i-8, par, 0)
        stamp(5, 1)
        a("s_cmp_lt_u32 s54, 17")
        a(f"v_cvt_pk_bf16_f32 {v(P+15)}, {v(S+30)}, {v(S+31)}")
        a(f"v_add_f32 {v(vL)}, {v(vL)}, {v(S+30)}")
        a(f"v_add_f32 {v(vL+1)}, {v(vL+1)}, {v(S+31)}")
        a(f"s_waitcnt vmcnt({len(pf)})")
        a("s_barrier")
        if PRI: a(f"s_setprio {PRI[1]}")
        if par == 0:
            a(f"s_cbranch_scc0 .Lattn_fin")
        else:
            a(f"s_branch {loop}")
    for z in zblocks: z()
    def fstep(i, z=False):
        cnt = sum(nin(k) for k in range(i+1, min(16, i+D)))
        a(f"s_waitcnt lgkmcnt({cnt})")
        mfma(i, z)
        if i + D < 16: fload(i+D, 0, 0)
    a.label(".Lattn_finz")
    for i in range(4): fstep(i, True)
    a("s_branch .Lattn_finj")
    a.label(".Lattn_fin")
    if APF == 2: a("buffer_load_dword v37, v36, s[4:7], s65 offen")
    a("s_cmp_lg_u32 s64, 0")
    a("s_cbranch_scc1 .Lattn_finz")
    for i in range(16):
        if i == 4: a.label(".Lattn_finj")
        fstep(i)
    stampx(61)
    a(f"v_add_f32 {v(vL)}, {v(vL)}, {v(vL+1)}")
    a(f"v_mov_b32 {v(vT)}, {v(vL)}")
    a("s_nop 1")
    a(f"v_permlane32_swap_b32 {v(vL)}, {v(vT)}")
    a("s_nop 1")
    a(f"v_add_f32 {v(vM+1)}, {v(vL)}, {v(vT)}")
    a(f"v_sub_f32 {v(vM)}, 0, {v(NM)}")
    a("s_lshl_b32 s50, s29, 16")
    a("s_lshl_b32 s51, s30, 13")
    a("s_add_u32 s51, s51, s50")
    a("s_add_u32 s51, s51, 32768")
    a("s_xor_b32 s50, s51, 0x10000")
    a("v_lshlrev_b32 v13, 4, v1")
    a("v_add_u32 v14, s51, v13")
    a("v_add_u32 v15, s50, v13")
    a("v_lshlrev_b32 v13, 3, v1")
    a("s_lshl_b32 s51, s28, 9")
    a(f"s_add_u32 s51, s51, {QS}")
    a("s_xor_b32 s50, s51, 0x800")
    a("v_add_u32 v12, s51, v13")
    a("v_add_u32 v13, s50, v13")
    a(f"ds_write_b64 v12, {v(vM,2)}")
    a("s_nop 4")
    g1 = a.newlabel("g1"); gj = a.newlabel("gj")
    a("s_cmp_eq_u32 s29, 1")
    a(f"s_cbranch_scc1 {g1}")
    for i in range(8):
        a(f"ds_write_b128 v14, {v(O+32+4*i,4)} offset:{i*1024}")
    a("s_waitcnt lgkmcnt(0)")
    a("s_barrier")
    a(f"s_branch {gj}")
    a.label(g1)
    for i in range(8):
        a(f"ds_write_b128 v14, {v(O+4*i,4)} offset:{i*1024}")
    a("s_waitcnt lgkmcnt(0)")
    for i in range(32):
        a(f"v_mov_b32 {v(O+i)}, {v(O+32+i)}")
    a.label(gj)
    a("s_barrier")
    a(f"ds_read_b64 {v(S,2)}, v13")
    for i in range(8):
        a(f"ds_read_b128 {v(O+32+4*i,4)}, v15 offset:{i*1024}")
    a("s_waitcnt lgkmcnt(8)")
    a(f"v_max_f32 {v(vMX)}, {v(vM)}, {v(S)}")
    a(f"v_sub_f32 {v(vAL)}, {v(vM)}, {v(vMX)}")
    a(f"v_sub_f32 {v(vT)}, {v(S)}, {v(vMX)}")
    a(f"v_exp_f32 {v(vAL)}, {v(vAL)}")
    a(f"v_exp_f32 {v(vT)}, {v(vT)}")
    a("s_nop 0")
    a(f"v_mul_f32 {v(vL)}, {v(vM+1)}, {v(vAL)}")
    a(f"v_fmac_f32 {v(vL)}, {v(S+1)}, {v(vT)}")
    a(f"v_rcp_f32 {v(vL)}, {v(vL)}")
    a("s_nop 0")
    a(f"v_mul_f32 {v(vAL)}, {v(vAL)}, {v(vL)}")
    a(f"v_mul_f32 {v(vT)}, {v(vT)}, {v(vL)}")
    a("s_lshl_b32 s50, s59, 13")
    a("s_lshl_b32 s51, s26, 5")
    a("s_add_u32 s50, s50, s51")
    a("s_lshl_b32 s51, s29, 12")
    a("s_add_u32 s50, s50, s51")
    a(f"v_lshlrev_b32 v13, 5, {v(T)}")
    a(f"v_lshl_add_u32 v13, {v(T+1)}, 4, v13")
    a("s_waitcnt lgkmcnt(0)")
    for i in range(32):
        a(f"v_mul_f32 {v(O+i)}, {v(O+i)}, {v(vAL)}")
        a(f"v_fmac_f32 {v(O+i)}, {v(O+32+i)}, {v(vT)}")
    for db in range(2):
        store_bf16_perm(a, O+16*db, FR+8*db, 13, 20, "s50", db*2048, gs=1024)
    stampx(62)
    if dbg:
        a("s_waitcnt vmcnt(0)")
        stampx(63)
        make_srd(a, 84, 46, 0x8000000, 256*8*512)
        a("s_lshl_b32 s50, s2, 12")
        a("s_lshl_b32 s51, s28, 9")
        a("s_add_u32 s50, s50, s51")
        a("v_lshlrev_b32 v13, 2, v1")
        a("buffer_store_dword v3, v13, s[84:87], s50 offen")
        a("buffer_store_dword v9, v13, s[84:87], s50 offen offset:256")
    a.label(end)
    a("s_endpgm")
    return name, 256, (256, 512, 163840)
```

```python
class Asm:
    def __init__(self):
        self.lines = []
        self.uid = 0
    def __call__(self, s):
        self.lines.append("    " + s)
    def label(self, s):
        self.lines.append(s + ":")
    def raw(self, s):
        self.lines.append(s)
    def newlabel(self, p="L"):
        self.uid += 1
        return f".{p}_{self.uid}"
    def text(self):
        return "\n".join(self.lines) + "\n"

KA = dict(x=0, ckv=8, wq=16, wuk=24, wuv=32, wo=40, bx=48, wg=56, wu=64, wd=72, c=80, wmod=88, out=96, dbg=104, ws=112)
WS_MOD = 0
WS_H = 0x10000
WS_K = 0x400000
WS_V = 0x1400000
WS_CTX = 0x2400000
WS_PART = 0x3400000
WS_X1 = 0x4400000
WS_H2 = 0x4800000
WS_ACT = 0x4C00000
import os as _os
if int(_os.environ.get('REUSE', '0')):
    WS_PART = 0x400000; WS_X1 = 0xC00000; WS_H2 = 0x1000000; WS_ACT = 0x1400000

def v(i, n=1):
    return f"v{i}" if n == 1 else f"v[{i}:{i+n-1}]"
def s(i, n=1):
    return f"s{i}" if n == 1 else f"s[{i}:{i+n-1}]"

def kernel_begin(a, name):
    a.raw(f".globl {name}")
    a.raw(".p2align 8")
    a.raw(f".type {name},@function")
    a.label(name)

def kernel_desc(name, nvgpr, nsgpr=102):
    acc = (nvgpr + 3) // 4 * 4
    return f""".p2align 6
.amdhsa_kernel {name}
  .amdhsa_next_free_vgpr {nvgpr}
  .amdhsa_next_free_sgpr {nsgpr}
  .amdhsa_accum_offset {acc}
  .amdhsa_group_segment_fixed_size 0
  .amdhsa_kernarg_size 120
  .amdhsa_user_sgpr_count 2
  .amdhsa_user_sgpr_kernarg_segment_ptr 1
  .amdhsa_system_sgpr_workgroup_id_x 1
.end_amdhsa_kernel
"""

def load_ptr(a, sreg, key):
    a(f"s_load_dwordx2 {s(sreg,2)}, s[0:1], {KA[key]}")

def make_srd(a, d, ptr, off, nbytes):
    if off:
        a(f"s_add_u32 {s(d)}, {s(ptr)}, {hex(off)}")
        a(f"s_addc_u32 {s(d+1)}, {s(ptr+1)}, 0")
        a(f"s_and_b32 {s(d+1)}, {s(d+1)}, 0xffff")
    else:
        a(f"s_mov_b32 {s(d)}, {s(ptr)}")
        a(f"s_and_b32 {s(d+1)}, {s(ptr+1)}, 0xffff")
    a(f"s_mov_b32 {s(d+2)}, {hex(nbytes)}")
    a(f"s_mov_b32 {s(d+3)}, 0x20000")

def touch(a, srd, regs, g, tmp, vx=None):
    st = 0
    assert all(nb % 8192 == 0 for _, nb in regs)
    a(f"s_min_u32 {s(g)}, {s(g)}, {sum(nb//8192 for _, nb in regs) - 1}")
    for i, (p, nb) in enumerate(regs):
        if i == 0:
            a(f"s_mov_b32 {s(srd)}, {s(p)}")
            a(f"s_mov_b32 {s(srd+1)}, {s(p+1)}")
            a(f"s_mov_b32 {s(srd+2)}, {hex(nb)}")
            a(f"s_mov_b32 {s(tmp)}, 0")
        else:
            a(f"s_cmp_ge_u32 {s(g)}, {st}")
            a(f"s_cselect_b32 {s(srd)}, {s(p)}, {s(srd)}")
            a(f"s_cselect_b32 {s(srd+1)}, {s(p+1)}, {s(srd+1)}")
            a(f"s_cselect_b32 {s(srd+2)}, {hex(nb)}, {s(srd+2)}")
            a(f"s_cselect_b32 {s(tmp)}, {st}, {s(tmp)}")
        st += (nb + 8191)//8192
    a(f"s_and_b32 {s(srd+1)}, {s(srd+1)}, 0xffff")
    a(f"s_mov_b32 {s(srd+3)}, 0x20000")
    a(f"s_sub_u32 {s(tmp)}, {s(g)}, {s(tmp)}")
    a(f"s_lshl_b32 {s(tmp)}, {s(tmp)}, 13")
    if vx is None: return
    a(f"v_lshlrev_b32 {v(vx)}, 7, v1")
    a(f"buffer_load_dword {v(vx)}, {v(vx)}, {s(srd,4)}, {s(tmp)} offen")

def wave_sum(a, x, t):
    a("s_nop 1")
    a(f"v_add_f32_dpp {v(x)}, {v(x)}, {v(x)} quad_perm:[1,0,3,2] row_mask:0xf bank_mask:0xf")
    a("s_nop 1")
    a(f"v_add_f32_dpp {v(x)}, {v(x)}, {v(x)} quad_perm:[2,3,0,1] row_mask:0xf bank_mask:0xf")
    a("s_nop 1")
    a(f"v_add_f32_dpp {v(x)}, {v(x)}, {v(x)} row_half_mirror row_mask:0xf bank_mask:0xf")
    a("s_nop 1")
    a(f"v_add_f32_dpp {v(x)}, {v(x)}, {v(x)} row_mirror row_mask:0xf bank_mask:0xf")
    a(f"v_mov_b32 {v(t)}, {v(x)}")
    a("s_nop 1")
    a(f"v_permlane16_swap_b32 {v(x)}, {v(t)}")
    a("s_nop 1")
    a(f"v_add_f32 {v(x)}, {v(x)}, {v(t)}")
    a(f"v_mov_b32 {v(t)}, {v(x)}")
    a("s_nop 1")
    a(f"v_permlane32_swap_b32 {v(x)}, {v(t)}")
    a("s_nop 1")
    a(f"v_add_f32 {v(x)}, {v(x)}, {v(t)}")

def round_bf16(a, d, x):
    a(f"v_cvt_pk_bf16_f32 {v(d)}, {v(x)}, {v(x)}")
    a(f"v_lshlrev_b32 {v(d)}, 16, {v(d)}")

def ln_loads(a, t0, sMOD, voff8, shift_col, scale_col):
    G = t0 + 4
    S = t0 + 12
    a(f"s_mov_b32 s90, {scale_col*4}")
    a(f"s_mov_b32 s91, {shift_col*4}")
    a(f"buffer_load_dwordx4 {v(G,4)}, {v(voff8)}, {s(sMOD,4)}, s90 offen")
    a(f"buffer_load_dwordx4 {v(G+4,4)}, {v(voff8)}, {s(sMOD,4)}, s90 offen offset:16")
    a(f"buffer_load_dwordx4 {v(S,4)}, {v(voff8)}, {s(sMOD,4)}, s91 offen")
    a(f"buffer_load_dwordx4 {v(S+4,4)}, {v(voff8)}, {s(sMOD,4)}, s91 offen offset:16")

def ln_row(a, X, t0, sMOD, voff8, shift_col, scale_col, outregs, loads=True):
    G = t0 + 4
    S = t0 + 12
    if loads: ln_loads(a, t0, sMOD, voff8, shift_col, scale_col)
    sm, tt, va = t0, t0 + 1, t0 + 2
    a(f"v_add_f32 {v(sm)}, {v(X)}, {v(X+1)}")
    for i in range(2, 8):
        a(f"v_add_f32 {v(sm)}, {v(sm)}, {v(X+i)}")
    wave_sum(a, sm, tt)
    a(f"v_mul_f32 {v(sm)}, 0x3b000000, {v(sm)}")
    for i in range(8):
        a(f"v_sub_f32 {v(X+i)}, {v(X+i)}, {v(sm)}")
    a(f"v_mul_f32 {v(va)}, {v(X)}, {v(X)}")
    for i in range(1, 8):
        a(f"v_fmac_f32 {v(va)}, {v(X+i)}, {v(X+i)}")
    wave_sum(a, va, tt)
    a(f"v_mov_b32 {v(tt)}, 0x3727c5ac")
    a(f"v_fmac_f32 {v(tt)}, 0x3b000000, {v(va)}")
    a(f"v_rsq_f32 {v(tt)}, {v(tt)}")
    a("s_waitcnt vmcnt(0)" if loads else "s_nop 0")
    for i in range(8):
        a(f"v_mul_f32 {v(X+i)}, {v(X+i)}, {v(tt)}")
    for i in range(8):
        a(f"v_fma_f32 {v(X+i)}, {v(X+i)}, {v(G+i)}, {v(S+i)}")
    for i in range(4):
        a(f"v_cvt_pk_bf16_f32 {v(outregs+i)}, {v(X+2*i)}, {v(X+2*i+1)}")

def unpack8(a, src, dst):
    for i in range(4):
        a(f"v_lshlrev_b32 {v(dst+2*i)}, 16, {v(src+i)}")
        a(f"v_and_b32 {v(dst+2*i+1)}, 0xffff0000, {v(src+i)}")
```

```python
from common import *

class LdsAddr:
    def __init__(self, a, regs, nseg, alloc):
        self.base = regs
        self.seg = {0: regs}
        for sg in range(1, nseg):
            rr = []
            for r in regs:
                n = alloc()
                a(f"v_add_u32 {v(n)}, {hex(sg*65536)}, {v(r)}")
                rr.append(n)
            self.seg[sg] = rr
    def get(self, idx, off):
        sg = off // 65536
        return self.seg[sg][idx], off % 65536

def lane_decomp(a, L, tmp):
    a(f"v_and_b32 {v(tmp)}, 31, {v(L)}")
    a(f"v_lshrrev_b32 {v(tmp+1)}, 5, {v(L)}")
    a(f"v_bfe_u32 {v(tmp+2)}, {v(L)}, 2, 2")
    a(f"v_and_b32 {v(tmp+3)}, 3, {v(L)}")
    a(f"v_bfe_u32 {v(tmp+4)}, {v(L)}, 4, 1")

def xfrag_addrs(a, T, dst, rowbytes, nchunkbits_shift, sbase=None):
    r, h = T, T+1
    a(f"v_bfe_u32 {v(dst)}, {v(r)}, 1, 3")
    a(f"v_xor_b32 {v(dst)}, {v(dst)}, {v(h)}")
    a(f"v_lshlrev_b32 {v(dst)}, 4, {v(dst)}")
    a(f"v_lshl_add_u32 {v(dst)}, {v(r)}, 7, {v(dst)}")
    if sbase is not None:
        a(f"v_add_u32 {v(dst)}, {sbase}, {v(dst)}")
    for sidx in range(1, 4):
        a(f"v_xor_b32 {v(dst+sidx)}, {sidx<<5}, {v(dst)}")

def wfrag_addr(a, T, dst, tmp, RB, perm, nb_sgpr_or_int, const_off):
    h, r4, c, cb = T+1, T+2, T+3, T+4
    a(f"v_lshl_add_u32 {v(dst)}, {v(h)}, {2 if perm else 3}, {v(r4)}")
    a(f"v_mul_u32_u24 {v(dst)}, {RB}, {v(dst)}")
    if RB >= 256:
        a(f"v_xor_b32 {v(tmp)}, {nb_sgpr_or_int}, {v(r4)}")
    else:
        a(f"v_lshrrev_b32 {v(tmp)}, 1, {v(r4)}")
        a(f"v_xor_b32 {v(tmp)}, {nb_sgpr_or_int}, {v(tmp)}")
    a(f"v_lshl_add_u32 {v(dst)}, {v(tmp)}, 6, {v(dst)}")
    a(f"v_lshl_add_u32 {v(dst)}, {v(cb)}, 5, {v(dst)}")
    a(f"v_lshl_add_u32 {v(dst)}, {v(c)}, 3, {v(dst)}")
    if const_off:
        a(f"v_add_u32 {v(dst)}, {hex(const_off)}, {v(dst)}")

def xdma_voff(a, L, sW, dst, tmp, lda, blk=False):
    a(f"v_lshrrev_b32 {v(dst)}, 3, {v(L)}")
    a(f"s_lshl_b32 s90, {sW}, 3")
    a(f"v_add_u32 {v(dst)}, s90, {v(dst)}")
    a(f"v_bfe_u32 {v(tmp)}, {v(dst)}, 1, 3")
    a(f"v_and_b32 {v(tmp+1)}, 7, {v(L)}")
    a(f"v_xor_b32 {v(tmp)}, {v(tmp)}, {v(tmp+1)}")
    if blk:
        a(f"v_lshrrev_b32 {v(tmp+1)}, 5, {v(dst)}")
        a(f"s_mov_b32 s90, {32*lda}")
        a(f"v_mul_lo_u32 {v(tmp+1)}, {v(tmp+1)}, s90")
        a(f"v_and_b32 {v(dst)}, 31, {v(dst)}")
        a(f"v_lshl_add_u32 {v(dst)}, {v(dst)}, 5, {v(tmp+1)}")
        a(f"v_and_b32 {v(tmp+1)}, 1, {v(tmp)}")
        a(f"v_lshl_add_u32 {v(dst)}, {v(tmp+1)}, 4, {v(dst)}")
        a(f"v_lshrrev_b32 {v(tmp)}, 1, {v(tmp)}")
        a(f"v_lshl_add_u32 {v(dst)}, {v(tmp)}, 10, {v(dst)}")
    else:
        a(f"s_mov_b32 s90, {lda}")
        a(f"v_mul_lo_u32 {v(dst)}, {v(dst)}, s90")
        a(f"v_lshl_add_u32 {v(dst)}, {v(tmp)}, 4, {v(dst)}")

def wdma_voff(a, L, sW, dst, tmp, ldb, BNs):
    LPR = BNs // 8
    RPI = 64 // LPR
    lg = LPR.bit_length() - 1
    a(f"v_lshrrev_b32 {v(dst)}, {lg}, {v(L)}")
    a(f"s_mul_i32 s90, {sW}, {RPI}")
    a(f"v_add_u32 {v(dst)}, s90, {v(dst)}")
    if BNs >= 128:
        a(f"v_and_b32 {v(tmp)}, 3, {v(dst)}")
    else:
        a(f"v_bfe_u32 {v(tmp)}, {v(dst)}, 1, 1")
    a(f"v_lshlrev_b32 {v(tmp)}, 2, {v(tmp)}")
    a(f"s_mov_b32 s90, {ldb}")
    a(f"v_mul_lo_u32 {v(dst)}, {v(dst)}, s90")
    a(f"v_and_b32 {v(tmp+1)}, {LPR-1}, {v(L)}")
    a(f"v_xor_b32 {v(tmp)}, {v(tmp)}, {v(tmp+1)}")
    a(f"v_lshl_add_u32 {v(dst)}, {v(tmp)}, 4, {v(dst)}")
    return RPI

MF = "v_mfma_f32_32x32x16_bf16"

import os
GDBG = os.environ.get('GDBG', '')
def gstamp(a, name, idx):
    if GDBG != name: return
    a("s_memtime s[80:81]")
    a("s_waitcnt lgkmcnt(0)")
    a(f"v_writelane_b32 v3, s80, {idx}")
def rstamp(a, name, idx):
    if GDBG != name: return
    a("s_memrealtime s[80:81]")
    a("s_waitcnt lgkmcnt(0)")
    a(f"v_writelane_b32 v3, s80, {idx}")
def gdump(a, name):
    if GDBG != name: return
    gstamp(a, name, 62)
    a("s_waitcnt vmcnt(0)")
    gstamp(a, name, 63)
    rstamp(a, name, 59)
    a("s_load_dwordx2 s[46:47], s[0:1], 112")
    a("s_waitcnt lgkmcnt(0)")
    make_srd(a, 84, 46, 0x8000000, 256*8*512)
    a("s_lshl_b32 s50, s2, 12")
    a("s_lshl_b32 s51, s28, 9")
    a("s_add_u32 s50, s50, s51")
    a("v_lshlrev_b32 v13, 2, v1")
    a("buffer_store_dword v3, v13, s[84:87], s50 offen")

def gemm_A(a, name, P):
    NW, WM, WN, TM, TN, NST, KT = (P[k] for k in ('NW','WM','WN','TM','TN','NST','KT'))
    lda, ldb, nsub, perm = P['lda'], P['ldb'], P['nsub'], P['perm']
    BM = WM*TM*32
    BN = WN*TN*32
    BNs = BN // nsub
    TNs = TN // nsub
    RB = BNs*2
    XB = BM*128
    WB = BNs*128
    STG = XB + nsub*WB
    kernel_begin(a, name)
    end = a.newlabel("end")
    a(f"s_cmp_ge_u32 s2, {P['nwg']}")
    a(f"s_cbranch_scc1 {end}")
    gstamp(a, name, 0)
    rstamp(a, name, 58)
    P['setup'](a, 0)
    a("v_and_b32 v1, 63, v0")
    a("v_lshrrev_b32 v2, 6, v0")
    a("s_nop 0")
    a("v_readfirstlane_b32 s28, v2")
    nreg = [16]
    def alloc(n=1, al=1):
        nreg[0] = (nreg[0] + al - 1)//al*al
        r = nreg[0]; nreg[0] += n
        return r
    T = 4
    vXd = alloc(); vWd = alloc()
    xblk = P.get('xblk', False)
    a("s_nop 2")
    xdma_voff(a, 1, "s28", vXd, 10, lda, xblk)
    RPI = wdma_voff(a, 1, "s28", vWd, 10, ldb, BNs)
    a(f"s_lshl_b32 s33, s28, 10")
    gstamp(a, name, 20)
    a("s_waitcnt lgkmcnt(0)")
    P['setup'](a, 1)
    NSQ = P.get('nseq', 1); KT1 = KT; KT = KT*NSQ
    C = {}
    def late():
        a(f"s_and_b32 s29, s28, {WN-1}")
        a(f"s_lshr_b32 s30, s28, {WN.bit_length()-1}")
        lane_decomp(a, 1, T)
        xa = alloc(4)
        a(f"s_mul_i32 s31, s30, {TM*32*128}")
        xfrag_addrs(a, T, xa, 128, 0, "s31")
        wa = []
        for sub in range(nsub):
            for t in range(TNs):
                r = alloc()
                a(f"s_mul_i32 s31, s29, {TNs}")
                a(f"s_add_u32 s31, s31, {t}")
                a(f"s_and_b32 s32, s31, 3")
                a(f"s_lshr_b32 s31, s31, 2")
                a(f"s_lshl_b32 s31, s31, 8")
                wfrag_addr(a, T, r, 10, RB, perm, "s32", XB + sub*WB)
                a(f"v_add_u32 {v(r)}, s31, {v(r)}")
                wa.append(r)
        nseg = (NST*STG + 65535)//65536
        C['XA'] = LdsAddr(a, [xa+i for i in range(4)], nseg, alloc)
        C['WA'] = LdsAddr(a, wa, nseg, alloc)
        P['setup'](a, 2)
        if 'init' in P: P['init'](a, dict(acc=acc, TM=TM, TN=TN, T=T, alloc=alloc))
    fr = [alloc((TM+TN)*4, 4) for _ in range(2)]
    acc = alloc(TM*TN*16*NSQ, 4)
    nX = BM//8//NW
    nWl = BNs//8//NW
    L = nX + nsub*nWl
    def dma(t):
        st = t % NST
        out = []
        for jj in range(nX):
            out.append([f"s_add_u32 m0, s33, {st*STG + jj*NW*1024}",
                        f"s_add_u32 s34, s24, {(t%KT1)*(4096 if xblk else 128) + jj*8*NW*lda}",
                        f"buffer_load_dwordx4 {v(vXd)}, s[4:7], s34 offen lds"])
        for sub in range(nsub):
            for jj in range(nWl):
                out.append([f"s_add_u32 m0, s33, {st*STG + XB + sub*WB + jj*NW*1024}",
                            f"s_add_u32 s34, s{25+sub}, {(t%KT1)*64*ldb + jj*NW*RPI*ldb + (t//KT1)*BNs*2}",
                            f"buffer_load_dwordx4 {v(vWd)}, {s(8+4*sub,4)}, s34 offen lds"])
        return out
    def reads(t, ks, f):
        st = t % NST
        for mb in range(TM):
            r, o = C['XA'].get(ks, st*STG + mb*4096)
            a(f"ds_read_b128 {v(f+4*mb,4)}, {v(r)} offset:{o}")
        for nb in range(TN):
            for half in range(2):
                off = st*STG + 16*ks*RB + half*(8 if perm else 4)*RB
                r, o = C['WA'].get(nb, off)
                a(f"ds_read_b64_tr_b16 {v(f+4*TM+4*nb+2*half,2)}, {v(r)} offset:{o}")
    prepos = P.get('prepos', 0)
    if 'pre' in P and not prepos: P['pre'](a, dict(alloc=alloc))
    wfirst = 'sync' in P
    if wfirst:
        for t in range(NST):
            for g in dma(t)[nX:]:
                for i in g: a(i)
        gstamp(a, name, 1)
        P['sync'](a, dict(alloc=alloc, acc=acc))
        gstamp(a, name, 2)
        for t in range(NST):
            for g in dma(t)[:nX]:
                for i in g: a(i)
        a(f"s_waitcnt vmcnt({nX*(NST-1)})")
    else:
        NPRO = int(os.environ.get('NPRO', P.get('npro', NST-1)))
        NPRO = max(1, min(NPRO, NST))
        gstamp(a, name, 21)
        for g in dma(0):
            for i in g: a(i)
        gstamp(a, name, 22)
        if 'pre' in P and prepos: P['pre'](a, dict(alloc=alloc))
        late()
        gstamp(a, name, 23)
        for t in range(1, NPRO):
            for g in dma(t):
                for i in g: a(i)
        gstamp(a, name, 1)
        extra = 0
        if 'mid' in P: extra = P['mid'](a, dict(alloc=alloc, L=L, NST=NPRO-prepos))
        gstamp(a, name, 2)
        a(f"s_waitcnt vmcnt({L*(NPRO-1) + extra})")
    gstamp(a, name, 24)
    a("s_barrier")
    gstamp(a, name, 25)
    reads(0, 0, fr[0])
    hooks = P.get('hooks', {})
    if 0 in hooks: hooks[0](a)
    d = []
    for t in range(NPRO, NST): d += dma(t)
    for t in range(KT):
        for ks in range(4):
            a("s_waitcnt lgkmcnt(0)")
            if ks < 3:
                reads(t, ks+1, fr[(ks+1)&1])
            elif t + 1 < KT:
                for g in d:
                    for i in g: a(i)
                if wfirst and t < NST-2:
                    a(f"s_waitcnt vmcnt({nX*(NST-2-t) + L*t})")
                else:
                    a(f"s_waitcnt vmcnt({L*min(NST-2, KT-2-t) + P.get('xw', {}).get(t, 0)})")
                a("s_barrier")
                gstamp(a, name, 3+t)
                reads(t+1, 0, fr[0])
                d = dma(t+NST) if t+NST < KT else []
                post = hooks.get(t+1)
            f = fr[ks&1]
            for nb in range(TN):
                for mb in range(TM):
                    c = acc + (nb*TM+mb)*16 + (t//KT1)*TM*TN*16
                    src = "0" if (t%KT1 == 0 and ks == 0) else v(c,16)
                    a(f"{MF} {v(c,16)}, {v(f+4*TM+4*nb,4)}, {v(f+4*mb,4)}, {src}")
                    if d:
                        for i in d.pop(0): a(i)
            if ks == 3 and t + 1 < KT and post: post(a)
            if (t, ks) in hooks: hooks[(t, ks)](a)
    a("s_nop 15")
    gstamp(a, name, 61)
    P['epilogue'](a, dict(acc=acc, TM=TM, TN=TN, T=T, alloc=alloc, TNs=TNs, fr=fr))
    gdump(a, name)
    a.label(end)
    a("s_endpgm")
    return name, nreg[0], (P['nwg'], NW*64, NST*STG + P.get('xlds', 0))
```

```python
from common import *
from gemm import *
import os

def store_bf16_perm(a, c, tmp, voff, srd, soff, imm, cvt="v_cvt_pk_bf16_f32", gs=32, pol=""):
    for g in range(2):
        t = tmp + 4*g
        for i in range(4):
            a(f"{cvt} {v(t+i)}, {v(c+8*g+2*i)}, {v(c+8*g+2*i+1)}")
        a(f"buffer_store_dwordx4 {v(t,4)}, {v(voff)}, {s(srd,4)}, {soff} offen offset:{imm+gs*g}{pol}")

def gen_kv(a):
    def setup(a, ph):
        if ph == 0:
            load_ptr(a, 40, 'ckv'); load_ptr(a, 42, 'wuk'); load_ptr(a, 44, 'wuv'); load_ptr(a, 46, 'ws'); load_ptr(a, 48, 'x')
            load_ptr(a, 72, 'c'); load_ptr(a, 76, 'wmod'); load_ptr(a, 92, 'dbg'); load_ptr(a, 100, 'wq')
            a("s_and_b32 s35, s2, 7")
            a("s_lshr_b32 s36, s2, 3")
            a("s_and_b32 s37, s36, 1")
            a("s_lshl_b32 s38, s35, 1")
            a("s_add_u32 s37, s37, s38")
            if os.environ.get('FLIPKV'): a("s_xor_b32 s37, s37, 2")
            a("s_bfe_u32 s38, s36, 0x10001")
            a("s_lshr_b32 s39, s36, 2")
        if ph == 1:
            make_srd(a, 4, 40, 0, 2048*1024)
            a("s_cmp_eq_u32 s38, 1")
            a("s_cselect_b32 s50, s44, s42")
            a("s_cselect_b32 s51, s45, s43")
            make_srd(a, 8, 50, 0, 512*8192)
            a("s_lshl_b32 s24, s39, 18")
            a("s_lshl_b32 s25, s37, 9")
            make_srd(a, 56, 48, 0, 2048*1024)
            make_srd(a, 72, 72, 0, 1024)
            make_srd(a, 76, 76, 0, 512*6144)
        if ph == 2:
            a(f"s_mul_i32 s52, s38, {WS_V-WS_K}")
            a("s_add_u32 s52, s46, s52")
            a("s_addc_u32 s53, s47, 0")
            make_srd(a, 16, 52, WS_K, 32*2048*256)
            make_srd(a, 60, 46, WS_MOD, 12288)
            make_srd(a, 64, 46, WS_H, 2048*1024)
            make_srd(a, 92, 92, 0, 256)
    st = {}
    NEED = int(os.environ.get('NEED', '64'))
    T1 = int(os.environ.get('T1', '0'))
    PT = int(os.environ.get('PT', '0'))
    WQ = int(os.environ.get('WQ', '5'))
    WO = int(os.environ.get('WO', '0'))
    S1 = int(os.environ.get('S1', '2'))
    N0 = 2 if S1 else 1
    def pre(a, c):
        t = c['alloc'](40, 4); st['t'] = t
        a("s_lshl_b32 s68, s2, 3")
        a("s_add_u32 s68, s68, s28")
        a("s_lshl_b32 s68, s68, 10")
        a(f"v_lshlrev_b32 {v(t)}, 4, v1")
        a(f"v_lshlrev_b32 {v(t+1)}, 5, v1")
        a(f"buffer_load_dwordx4 {v(t+4,4)}, {v(t)}, s[56:59], s68 offen")
        a("s_min_u32 s69, s36, 23")
        a("s_mul_i32 s70, s35, 24")
        a("s_add_u32 s69, s69, s70")
        a(f"v_lshrrev_b32 {v(t+2)}, 2, v0")
        a(f"v_lshlrev_b32 {v(t+3)}, 3, {v(t+2)}")
        a(f"buffer_load_dwordx2 {v(t+16,2)}, {v(t+3)}, s[72:75], 0 offen")
        a(f"v_mul_u32_u24 {v(t+2)}, {4*6144}, {v(t+2)}")
        a(f"v_and_b32 {v(t+3)}, 3, v0")
        a(f"v_lshl_add_u32 {v(t+2)}, {v(t+3)}, 3, {v(t+2)}")
        a("s_lshl_b32 s70, s69, 5")
        for j in range(4):
            a(f"buffer_load_dwordx2 {v(t+20+2*j,2)}, {v(t+2)}, s[76:79], s70 offen")
            if j < 3: a(f"s_add_u32 s70, s70, 6144")
    def silu_bf(a, d, x, tmp):
        a(f"v_mul_f32 {v(tmp)}, 0xbfb8aa3b, {v(x)}")
        a(f"v_exp_f32 {v(tmp)}, {v(tmp)}")
        a("s_nop 0")
        a(f"v_add_f32 {v(tmp)}, 1.0, {v(tmp)}")
        a(f"v_rcp_f32 {v(tmp)}, {v(tmp)}")
        a("s_nop 0")
        a(f"v_mul_f32 {v(tmp)}, {v(tmp)}, {v(x)}")
        round_bf16(a, d, tmp)
    def mid(a, c):
        t = st['t']
        if T1 == 0: pf_0(a)
        a(f"s_waitcnt vmcnt({c['L']*c['NST'] + (T1 == 0)*N0})")
        for i in range(2):
            a(f"v_lshlrev_b32 {v(t+28+2*i)}, 16, {v(t+16+i)}")
            a(f"v_and_b32 {v(t+29+2*i)}, 0xffff0000, {v(t+16+i)}")
        for j in range(4): silu_bf(a, t+28+j, t+28+j, t+36)
        for j in range(4):
            for i in range(2):
                a(f"v_lshlrev_b32 {v(t+36)}, 16, {v(t+20+2*j+i)}")
                a(f"v_and_b32 {v(t+37)}, 0xffff0000, {v(t+20+2*j+i)}")
                op = "v_mul_f32" if j == 0 else "v_fmac_f32"
                a(f"{op} {v(t+32+2*i)}, {v(t+36)}, {v(t+28+j)}")
                a(f"{op} {v(t+33+2*i)}, {v(t+37)}, {v(t+28+j)}")
        a("s_nop 1")
        for ror in (8, 4):
            for i in range(4):
                a(f"v_add_f32_dpp {v(t+32+i)}, {v(t+32+i)}, {v(t+32+i)} row_ror:{ror} row_mask:0xf bank_mask:0xf")
        for sw in ("v_permlane16_swap_b32", "v_permlane32_swap_b32"):
            for i in range(4): a(f"v_mov_b32 {v(t+36+i)}, {v(t+32+i)}")
            a("s_nop 1")
            for i in range(4): a(f"{sw} {v(t+32+i)}, {v(t+36+i)}")
            a("s_nop 1")
            for i in range(4): a(f"v_add_f32 {v(t+32+i)}, {v(t+32+i)}, {v(t+36+i)}")
        a("s_lshl_b32 s70, s28, 6")
        a("s_add_u32 s70, s70, 147456")
        a(f"v_lshlrev_b32 {v(t+3)}, 4, {v(t+3)}")
        a(f"v_add_u32 {v(t+3)}, s70, {v(t+3)}")
        a(f"ds_write_b128 {v(t+3)}, {v(t+32,4)}")
        X = t+8; sm, tt, va = t+16, t+17, t+18
        unpack8(a, t+4, X)
        a(f"v_add_f32 {v(sm)}, {v(X)}, {v(X+1)}")
        for i in range(2, 8): a(f"v_add_f32 {v(sm)}, {v(sm)}, {v(X+i)}")
        wave_sum(a, sm, tt)
        a(f"v_mul_f32 {v(sm)}, 0x3b000000, {v(sm)}")
        for i in range(8): a(f"v_sub_f32 {v(X+i)}, {v(X+i)}, {v(sm)}")
        a(f"v_mul_f32 {v(va)}, {v(X)}, {v(X)}")
        for i in range(1, 8): a(f"v_fmac_f32 {v(va)}, {v(X+i)}, {v(X+i)}")
        wave_sum(a, va, tt)
        a(f"v_mov_b32 {v(tt)}, 0x3727c5ac")
        a(f"v_fmac_f32 {v(tt)}, 0x3b000000, {v(va)}")
        a(f"v_rsq_f32 {v(tt)}, {v(tt)}")
        a("s_nop 0")
        for i in range(8): a(f"v_mul_f32 {v(X+i)}, {v(X+i)}, {v(tt)}")
        a("s_waitcnt lgkmcnt(0)")
        return int(T1 == 0)*N0
    def pf_w(a, r, sub, half=None):
        x = st['t']+19
        a("s_cmp_ge_u32 s68, 0x100000")
        a("s_cselect_b32 s96, s44, s42")
        a("s_cselect_b32 s97, s45, s43")
        make_srd(a, 96, 96, 0, 4 << 20)
        a("s_and_b32 s70, s68, 0xfffff")
        a("s_lshl_b32 s70, s70, 2")
        a(f"v_bfe_u32 {v(r)}, v1, 1, {3 if half is None else 2}")
        a(f"v_lshlrev_b32 {v(r)}, 9, {v(r)}")
        a(f"v_and_b32 {v(r+1)}, 1, v1")
        a(f"v_lshl_add_u32 {v(r)}, {v(r+1)}, 7, {v(r)}")
        a(f"buffer_load_dword {v(x)}, {v(r)}, s[96:99], s70 offen offset:{sub*256 + (half or 0)*2048}")
    def pf_0(a):
        if S1:
            t = st['t']
            pf_w(a, t+36, 0)
            a(f"v_and_b32 {v(t+38)}, 7, v1")
            a(f"v_lshlrev_b32 {v(t+38)}, 7, {v(t+38)}")
            a(f"buffer_load_dword {v(t+19)}, {v(t+38)}, s[4:7], s68 offen")
            return
        a("s_lshr_b32 s70, s68, 10")
        if WQ:
            a("s_cmp_ge_u32 s70, 1280")
            a("s_cselect_b32 s71, 1280, 0")
            a("s_sub_u32 s70, s70, s71")
        touch(a, 96, [(42, 4 << 20), (44, 4 << 20), (40, 2 << 20)] + ([] if WQ else [(100, 4 << 20)]), 70, 71, st['t']+19)
    def pf_q(a, half=None):
        x = st['t']+19
        make_srd(a, 96, 100, 0, 4 << 20)
        a("s_lshl_b32 s70, s68, 1")
        a(f"v_and_b32 {v(x-3)}, {15 if half is None else 7}, v1")
        a(f"v_lshlrev_b32 {v(x-3)}, 7, {v(x-3)}")
        a(f"buffer_load_dword {v(x)}, {v(x-3)}, s[96:99], s70 offen offset:{(half or 0)*1024}")
    def pf_o(a):
        x = st['t']+19
        make_srd(a, 96, 40, 0, 4 << 20)
        a("s_lshl_b32 s70, s68, 1")
        a(f"buffer_load_dword {v(x)}, {v(x-3)}, s[96:99], s70 offen")
    def pf_m(ptrs):
        def f(a):
            x = st['t']+19
            a("s_lshr_b32 s70, s68, 10")
            a("s_mul_i32 s70, s70, 896")
            a(f"v_and_b32 {v(x-2)}, 7, v1")
            a(f"v_min_u32 {v(x-2)}, 6, {v(x-2)}")
            a(f"v_lshlrev_b32 {v(x-2)}, 7, {v(x-2)}")
            for p in ptrs:
                make_srd(a, 96, p, 0, 512*1792*2)
                a(f"buffer_load_dword {v(x)}, {v(x-2)}, s[96:99], s70 offen")
        return f
    def pf_a(a):
        a("s_load_dwordx8 s[40:47], s[0:1], 40")
        a("s_load_dwordx2 s[48:49], s[0:1], 72")
    def pf_b(a):
        a("s_lshr_b32 s70, s68, 10")
        touch(a, 96, [(40, 4 << 20), (44, 512*1792*2), (46, 512*1792*2), (48, 512*1792*2)], 70, 71, st['t']+19)
    def h0(a):
        t = st['t']; sk = a.newlabel("sk")
        if T1 == 1: pf_0(a)
        a("s_cmp_lg_u32 s28, 0")
        a(f"s_cbranch_scc1 {sk}")
        a("s_cmp_ge_u32 s36, 24")
        a(f"s_cbranch_scc1 {sk}")
        a(f"v_and_b32 {v(t+2)}, 15, v1")
        a(f"v_lshlrev_b32 {v(t+2)}, 2, {v(t+2)}")
        a(f"v_add_u32 {v(t+3)}, 0x24000, {v(t+2)}")
        for w in range(8): a(f"ds_read_b32 {v(t+20+w)}, {v(t+3)} offset:{w*64}")
        a("s_waitcnt lgkmcnt(0)")
        for w in range(1, 8): a(f"v_add_f32 {v(t+20)}, {v(t+20)}, {v(t+20+w)}")
        round_bf16(a, t+20, t+20)
        a("s_lshr_b32 s70, s69, 5")
        a("s_cmp_eq_u32 s70, 1")
        a("s_cselect_b32 s71, 1.0, 0")
        a("s_cmp_eq_u32 s70, 4")
        a("s_cselect_b32 s71, 1.0, s71")
        a(f"v_add_f32 {v(t+20)}, s71, {v(t+20)}")
        round_bf16(a, t+20, t+20)
        a("s_lshl_b32 s70, s69, 6")
        a(f"buffer_store_dword {v(t+20)}, {v(t+2)}, s[60:63], s70 offen sc0 sc1")
        a.label(sk)
    def h1(a):
        t = st['t']; sk = a.newlabel("sk")
        a("s_cmp_lg_u32 s28, 0")
        a(f"s_cbranch_scc1 {sk}")
        a("s_cmp_ge_u32 s36, 24")
        a(f"s_cbranch_scc1 {sk}")
        a("s_cmp_ge_u32 s69, 64")
        a(f"s_cbranch_scc1 {sk}")
        a(f"v_mov_b32 {v(t+2)}, 0")
        a(f"v_mov_b32 {v(t+3)}, 1")
        a("s_mov_b64 exec, 1")
        a(f"buffer_atomic_add {v(t+3)}, {v(t+2)}, s[92:95], 0 offen sc1")
        a("s_mov_b64 exec, -1")
        a.label(sk)
    def h5(a):
        t = st['t']
        a(f"v_mov_b32 {v(t+2)}, 0")
        a(f"buffer_load_dword {v(t+3)}, {v(t+2)}, s[92:95], 0 offen sc0 sc1")
    def h6(a):
        t = st['t']; ok = a.newlabel("ok"); lp = a.newlabel("lp"); dn = a.newlabel("dn"); fl = a.newlabel("fl")
        G, S = t+20, t+28
        a("s_movk_i32 s71, 0x2000")
        a(f"s_waitcnt vmcnt({int(PT == 13)})")
        a.label(lp)
        a(f"v_readfirstlane_b32 s70, {v(t+3)}")
        a("s_nop 3")
        a(f"s_cmp_ge_u32 s70, {NEED}")
        a(f"s_cbranch_scc1 {ok}")
        a("s_sleep 4")
        a(f"buffer_load_dword {v(t+3)}, {v(t+2)}, s[92:95], 0 offen sc0 sc1")
        a("s_waitcnt vmcnt(0)")
        a("s_sub_u32 s71, s71, 1")
        a("s_cmp_lg_u32 s71, 0")
        a(f"s_cbranch_scc1 {lp}")
        for i in range(16): a(f"v_mov_b32 {v(G+i)}, 0")
        a("s_mov_b32 s70, 0")
        a("s_mov_b32 s71, 0")
        a.label(fl)
        a(f"buffer_load_ushort {v(t+16)}, {v(t+2)}, s[72:75], s70 offen")
        for dst, off in ((S, 0), (G, 1024)):
            a(f"buffer_load_dwordx4 {v(t+36,4)}, {v(t)}, s[76:79], s71 offen offset:{off}")
            a("s_waitcnt vmcnt(0)")
            if off == 0:
                a(f"v_lshlrev_b32 {v(t+16)}, 16, {v(t+16)}")
                silu_bf(a, t+16, t+16, t+17)
            for i in range(4):
                a(f"v_lshlrev_b32 {v(t+17)}, 16, {v(t+36+i)}")
                a(f"v_and_b32 {v(t+18)}, 0xffff0000, {v(t+36+i)}")
                a(f"v_fmac_f32 {v(dst+2*i)}, {v(t+17)}, {v(t+16)}")
                a(f"v_fmac_f32 {v(dst+2*i+1)}, {v(t+18)}, {v(t+16)}")
        a("s_add_u32 s70, s70, 2")
        a("s_add_u32 s71, s71, 6144")
        a("s_cmp_lt_u32 s70, 1024")
        a(f"s_cbranch_scc1 {fl}")
        for i in range(16): round_bf16(a, G+i, G+i)
        for i in range(8):
            a(f"v_add_f32 {v(G+i)}, 1.0, {v(G+i)}")
            round_bf16(a, G+i, G+i)
        a(f"s_branch {dn}")
        a.label(ok)
        a(f"buffer_load_dwordx4 {v(G,4)}, {v(t+1)}, s[60:63], 0 offen offset:2048 sc0 sc1")
        a(f"buffer_load_dwordx4 {v(G+4,4)}, {v(t+1)}, s[60:63], 0 offen offset:2064 sc0 sc1")
        a(f"buffer_load_dwordx4 {v(S,4)}, {v(t+1)}, s[60:63], 0 offen sc0 sc1")
        a(f"buffer_load_dwordx4 {v(S+4,4)}, {v(t+1)}, s[60:63], 0 offen offset:16 sc0 sc1")
        a.label(dn)
    def h7(a):
        t = st['t']; X = t+8; G, S = t+20, t+28
        for i in range(8): a(f"v_fma_f32 {v(X+i)}, {v(X+i)}, {v(G+i)}, {v(S+i)}")
        for i in range(4): a(f"v_cvt_pk_bf16_f32 {v(t+4+i)}, {v(X+2*i)}, {v(X+2*i+1)}")
        a(f"buffer_store_dwordx4 {v(t+4,4)}, {v(t)}, s[64:67], s68 offen")
    def init(a, c):
        T = c['T']
        st['acc'] = c['acc']
        vo = c['alloc'](); st['vo'] = vo; st['tmp'] = c['alloc'](16, 4)
        a(f"v_lshlrev_b32 {v(vo)}, 5, {v(T)}")
        a(f"v_lshl_add_u32 {v(vo)}, {v(T+1)}, 4, {v(vo)}")
        a("s_lshl_b32 s84, s39, 16")
        a("s_lshl_b32 s54, s30, 14")
        a("s_add_u32 s84, s84, s54")
        a("s_lshl_b32 s54, s37, 20")
        a("s_add_u32 s84, s84, s54")
        a("s_lshl_b32 s54, s29, 12")
        a("s_add_u32 s84, s84, s54")
    def part(a, sub, mb, nb, pol=""):
        a(f"s_add_u32 s54, s84, {mb*32*256 + sub*2048*256}")
        store_bf16_perm(a, st['acc'] + sub*64 + (nb*2+mb)*16, st['tmp'] + 8*(nb&1), st['vo'], 16, "s54", nb*2048, gs=1024, pol=pol)
    def epi(a, c):
        for mb in range(2):
            for nb in range(2): part(a, 1, mb, nb)
        a("s_waitcnt vmcnt(8)")
        h7(a)
    POL = os.environ.get('KVPOL', '')
    def seq(*fs):
        def f(a):
            for x in fs: x(a)
        return f
    pp = lambda mb, nb: (lambda a: part(a, 0, mb, nb, POL))
    P = dict(NW=8, WM=4, WN=2, TM=2, TN=2, NST=3, KT=8, nseq=2, lda=1024, ldb=8192, nsub=1, perm=False, nwg=256,
             setup=setup, epilogue=epi, mid=mid, pre=pre, xlds=512, init=init,
             xw={13: 1, 14: 1},
             hooks={0: h0, 3: h1, 9: pp(0,0), 10: pp(0,1), 11: pp(1,0), 12: pp(1,1), (13,1): h5, (15,1): h6})
    P['xw'][0] = N0
    def addhook(t, f):
        P['hooks'][t] = seq(P['hooks'][t], f) if t in P['hooks'] else f
        P['xw'][t] = P['xw'].get(t, 0) + 1
    SPL = int(os.environ.get('SPL', '1'))
    if SPL:
        for h in range(2):
            addhook(S1+h, lambda a, h=h: pf_w(a, st['t']+17, 1, h))
            addhook(WQ+h, lambda a, h=h: pf_q(a, h))
        WQ = 0
    elif S1: P['hooks'][S1] = lambda a: pf_w(a, st['t']+17, 1); P['xw'][S1] = 1
    if WQ: P['hooks'][WQ] = pf_q; P['xw'][WQ] = 1
    if WO:
        P['hooks'][(WO-1, 1)] = pf_a; P['hooks'][WO] = pf_o; P['xw'][WO] = 1
        P['hooks'][WO+1] = pf_m([44, 46]); P['xw'][WO+1] = 2
        P['hooks'][WO+2] = pf_m([48]); P['xw'][WO+2] = 1
    P['prepos'] = int(os.environ.get('PREPOS', '0'))
    if PT == 13:
        P['hooks'][(12, 1)] = pf_a; P['hooks'][(13, 2)] = pf_b; P['xw'][13] = 2; P['xw'][14] = 2
    elif PT:
        P['hooks'][(PT-1, 1)] = pf_a; P['hooks'][PT] = pf_b; P['xw'][PT] = 1
    return gemm_A(a, "k_kv_kernel", P)

def gen_oproj4(a):
    def setup(a, ph):
        if ph == 0:
            load_ptr(a, 40, 'wo'); load_ptr(a, 46, 'ws')
            a("s_and_b32 s35, s2, 7")
            a("s_lshr_b32 s36, s2, 3")
            a("s_lshr_b32 s37, s35, 1")
            if os.environ.get('FLIP'): a("s_xor_b32 s37, s37, 1")
            a("s_and_b32 s38, s35, 1")
            a("s_lshl_b32 s38, s38, 3")
            a("s_lshr_b32 s39, s36, 2")
            a("s_add_u32 s39, s39, s38")
            a("s_and_b32 s38, s36, 3")
        if ph == 1:
            make_srd(a, 4, 46, WS_CTX, 2048*8192)
            make_srd(a, 8, 40, 0, 4096*1024)
            a("s_lshl_b32 s24, s39, 20")
            a("s_lshl_b32 s54, s37, 16")
            a("s_add_u32 s24, s24, s54")
            a("s_lshl_b32 s25, s37, 20")
            a("s_lshl_b32 s54, s38, 8")
            a("s_add_u32 s25, s25, s54")
        if ph == 2:
            make_srd(a, 16, 46, WS_PART, 4*2048*1024)
    def epi(a, c):
        acc, TM, TN, T = c['acc'], c['TM'], c['TN'], c['T']
        vo = c['alloc'](); tmp = c['fr'][0]
        PB = int(os.environ.get('PB', '1'))
        a(f"v_lshlrev_b32 {v(vo)}, {5 if PB else 10}, {v(T)}")
        a(f"v_lshl_add_u32 {v(vo)}, {v(T+1)}, 4, {v(vo)}")
        a("s_lshl_b32 s34, s37, 21")
        a("s_lshl_b32 s54, s39, 17")
        a("s_add_u32 s34, s34, s54")
        a(f"s_mul_i32 s54, s30, {TM*32*1024}")
        a("s_add_u32 s34, s34, s54")
        a(f"s_lshl_b32 s54, s38, {13 if PB else 8}")
        a("s_add_u32 s34, s34, s54")
        a(f"s_mul_i32 s54, s29, {TN*32*2*(32 if PB else 1)}")
        a("s_add_u32 s34, s34, s54")
        kk = 0
        for mb in range(TM):
            a(f"s_add_u32 s54, s34, {mb*32*1024}")
            for nb in range(TN):
                store_bf16_perm(a, acc+(nb*TM+mb)*16, tmp + 8*(kk % 4), vo, 16, "s54", nb*(2048 if PB else 64), "v_cvt_pkrtz_f16_f32", gs=(1024 if PB else 32))
                kk += 1
    P = dict(NW=4, WM=2, WN=2, TM=2, TN=2, NST=4, KT=16, lda=8192, ldb=1024, nsub=1, perm=False, nwg=256, xblk=True,
             setup=setup, epilogue=epi)
    return gemm_A(a, "k_oproj_kernel", P)

def gen_oproj(a):
    def setup(a, ph):
        if ph == 0:
            load_ptr(a, 40, 'wo'); load_ptr(a, 46, 'ws')
            a("s_and_b32 s37, s2, 7")
            a("s_lshr_b32 s36, s2, 3")
            a("s_lshr_b32 s39, s36, 2")
            a("s_and_b32 s38, s36, 3")
        if ph == 1:
            make_srd(a, 4, 46, WS_CTX, 2048*8192)
            make_srd(a, 8, 40, 0, 4096*1024)
            a("s_lshl_b32 s24, s39, 21")
            a("s_lshl_b32 s54, s37, 15")
            a("s_add_u32 s24, s24, s54")
            a("s_lshl_b32 s25, s37, 19")
            a("s_lshl_b32 s54, s38, 8")
            a("s_add_u32 s25, s25, s54")
        if ph == 2:
            make_srd(a, 16, 46, WS_PART, 8*2048*1024)
    def epi(a, c):
        acc, TM, TN, T = c['acc'], c['TM'], c['TN'], c['T']
        vo = c['alloc'](); tmp = c['fr'][0]
        a(f"v_lshlrev_b32 {v(vo)}, 5, {v(T)}")
        a(f"v_lshl_add_u32 {v(vo)}, {v(T+1)}, 4, {v(vo)}")
        a("s_lshl_b32 s34, s37, 21")
        a("s_lshl_b32 s54, s39, 18")
        a("s_add_u32 s34, s34, s54")
        a(f"s_mul_i32 s54, s30, {TM*32*1024}")
        a("s_add_u32 s34, s34, s54")
        a(f"s_lshl_b32 s54, s38, 13")
        a("s_add_u32 s34, s34, s54")
        a(f"s_mul_i32 s54, s29, {TN*32*2*32}")
        a("s_add_u32 s34, s34, s54")
        kk = 0
        for mb in range(TM):
            a(f"s_add_u32 s54, s34, {mb*32*1024}")
            for nb in range(TN):
                store_bf16_perm(a, acc+(nb*TM+mb)*16, tmp + 8*(kk % 4), vo, 16, "s54", nb*2048, "v_cvt_pkrtz_f16_f32", gs=1024)
                kk += 1
    P = dict(NW=8, WM=4, WN=2, TM=2, TN=2, NST=3, KT=8, lda=8192, ldb=1024, nsub=1, perm=False, nwg=256, xblk=True,
             setup=setup, epilogue=epi)
    return gemm_A(a, "k_oproj_kernel", P)

def gen_gu(a):
    def setup(a, ph):
        if ph == 0:
            load_ptr(a, 40, 'wg'); load_ptr(a, 42, 'wu'); load_ptr(a, 46, 'ws')
            a("s_and_b32 s35, s2, 7")
            a("s_lshr_b32 s36, s2, 3")
            a("s_mul_i32 s37, s36, 37")
            a("s_lshr_b32 s37, s37, 8")
            a("s_mul_i32 s38, s37, 7")
            a("s_sub_u32 s38, s36, s38")
            a("s_lshr_b32 s39, s35, 1")
            a("s_lshl_b32 s39, s39, 2")
            a("s_add_u32 s39, s39, s37")
            a("s_and_b32 s54, s35, 1")
            a("s_mul_i32 s54, s54, 7")
            a("s_add_u32 s38, s38, s54")
        if ph == 1:
            make_srd(a, 4, 46, WS_H2, 2048*1024)
            make_srd(a, 8, 40, 0, 512*3584)
            make_srd(a, 12, 42, 0, 512*3584)
            a("s_lshl_b32 s24, s39, 17")
            a("s_lshl_b32 s25, s38, 8")
            a("s_mov_b32 s26, s25")
        if ph == 2:
            make_srd(a, 16, 46, WS_ACT, 2048*3584)
    NEED2 = int(os.environ.get('NEED2', '14'))
    def sync(a, c):
        A = c['acc']
        MV = c['alloc'](24, 4)
        o = c['alloc'](4, 4)
        tm = c['alloc'](4, 4)
        a(f"v_lshlrev_b32 {v(o)}, 4, v1")
        a(f"v_and_b32 {v(o+1)}, 1, v1")
        a(f"v_lshlrev_b32 {v(o+1)}, 3, {v(o+1)}")
        a(f"v_and_b32 {v(tm)}, 62, v1")
        a(f"v_lshl_add_u32 {v(o+1)}, {v(tm)}, 4, {v(o+1)}")
        a(f"v_lshlrev_b32 {v(o+2)}, 1, {v(o+1)}")
        a(f"v_mov_b32 {v(o+3)}, 0")
        def loads(R, srow):
            a(f"buffer_load_dwordx2 {v(R,2)}, {v(o+1)}, s[56:59], {srow} offen")
            a(f"buffer_load_dwordx2 {v(R+2,2)}, {v(o+1)}, s[56:59], {srow} offen offset:16")
            for p in range(4):
                if p: a(f"s_add_u32 s71, {srow}, {p*2048*1024}")
                a(f"buffer_load_dwordx4 {v(R+4+4*p,4)}, {v(o)}, s[64:67], {'s71' if p else srow} offen")
        def compute(R, srow, W):
            X, S, U = W, W+8, W+16
            unpack8(a, R+4, S)
            for p in range(1, 4):
                unpack8(a, R+4+4*p, U)
                for i in range(8): a(f"v_add_f32 {v(S+i)}, {v(S+i)}, {v(U+i)}")
            unpack8(a, R, X)
            for i in range(8): a(f"v_fmac_f32 {v(X+i)}, {v(S+i)}, {v(MV+i)}")
            a(f"s_lshl_b32 s71, {srow}, 1")
            a(f"buffer_store_dwordx4 {v(X,4)}, {v(o+2)}, s[72:75], s71 offen")
            a(f"buffer_store_dwordx4 {v(X+4,4)}, {v(o+2)}, s[72:75], s71 offen offset:32")
            sm, tt, va = tm, tm+1, tm+2
            a(f"v_add_f32 {v(sm)}, {v(X)}, {v(X+1)}")
            for i in range(2, 8): a(f"v_add_f32 {v(sm)}, {v(sm)}, {v(X+i)}")
            wave_sum(a, sm, tt)
            a(f"v_mul_f32 {v(sm)}, 0x3b000000, {v(sm)}")
            for i in range(8): a(f"v_sub_f32 {v(S+i)}, {v(X+i)}, {v(sm)}")
            a(f"v_mul_f32 {v(va)}, {v(S)}, {v(S)}")
            for i in range(1, 8): a(f"v_fmac_f32 {v(va)}, {v(S+i)}, {v(S+i)}")
            wave_sum(a, va, tt)
            a(f"v_mov_b32 {v(tt)}, 0x3727c5ac")
            a(f"v_fmac_f32 {v(tt)}, 0x3b000000, {v(va)}")
            a(f"v_rsq_f32 {v(tt)}, {v(tt)}")
            a("s_nop 0")
            for i in range(8): a(f"v_mul_f32 {v(S+i)}, {v(S+i)}, {v(tt)}")
            for i in range(8): a(f"v_fma_f32 {v(S+i)}, {v(S+i)}, {v(MV+16+i)}, {v(MV+8+i)}")
            for i in range(4): a(f"v_cvt_pk_bf16_f32 {v(U+i)}, {v(S+2*i)}, {v(S+2*i+1)}")
            a(f"buffer_store_dwordx2 {v(U,2)}, {v(o+1)}, s[4:7], {srow} offen sc0 sc1")
            a(f"buffer_store_dwordx2 {v(U+2,2)}, {v(o+1)}, s[4:7], {srow} offen offset:16 sc0 sc1")
        a("s_lshl_b32 s68, s38, 3")
        a("s_add_u32 s68, s68, s28")
        a("s_lshl_b32 s68, s68, 10")
        a("s_add_u32 s68, s68, s24")
        a("s_lshl_b32 s69, s38, 1")
        a("s_add_u32 s69, s69, s28")
        a("s_add_u32 s69, s69, 112")
        a("s_lshl_b32 s69, s69, 10")
        a("s_add_u32 s69, s69, s24")
        a("s_lshr_b32 s70, s38, 3")
        a("s_lshr_b32 s71, s28, 1")
        a("s_or_b32 s70, s70, s71")
        loads(A, "s68")
        for j, col in enumerate((1024, 1536, 2048)):
            a(f"s_movk_i32 s71, {col*4}")
            a(f"buffer_load_dwordx4 {v(MV+8*j,4)}, {v(o+2)}, s[60:63], s71 offen")
            a(f"buffer_load_dwordx4 {v(MV+8*j+4,4)}, {v(o+2)}, s[60:63], s71 offen offset:32")
        nb1 = a.newlabel("nb"); nb2 = a.newlabel("nb")
        a("s_cmp_lg_u32 s70, 0")
        a(f"s_cbranch_scc1 {nb1}")
        loads(A+20, "s69")
        a.label(nb1)
        a("s_waitcnt vmcnt(0)")
        gstamp(a, "k_gu_kernel", 20)
        compute(A, "s68", A+40)
        a("s_cmp_lg_u32 s70, 0")
        a(f"s_cbranch_scc1 {nb2}")
        a("s_nop 4")
        compute(A+20, "s69", A+40)
        a.label(nb2)
        gstamp(a, "k_gu_kernel", 21)
        a("s_waitcnt vmcnt(0)")
        gstamp(a, "k_gu_kernel", 22)
        a("s_barrier")
        gstamp(a, "k_gu_kernel", 23)
        nw = a.newlabel("nw"); lp = a.newlabel("lp"); ok = a.newlabel("ok"); go = a.newlabel("go"); fl = a.newlabel("fl")
        a("s_cmp_lg_u32 s28, 0")
        a(f"s_cbranch_scc1 {nw}")
        a("s_lshl_b32 s70, s39, 2")
        a(f"v_mov_b32 {v(tm)}, 1")
        a("s_mov_b64 exec, 1")
        a(f"buffer_atomic_add {v(tm)}, {v(o+3)}, s[92:95], s70 offen sc0 sc1")
        a("s_mov_b64 exec, -1")
        a("s_movk_i32 s69, 0x2000")
        a("s_waitcnt vmcnt(0)")
        a(f"v_readfirstlane_b32 s71, {v(tm)}")
        a("s_nop 3")
        a("s_add_u32 s71, s71, 1")
        gstamp(a, "k_gu_kernel", 24)
        a.label(lp)
        a(f"s_cmp_ge_u32 s71, {NEED2}")
        a(f"s_cbranch_scc1 {ok}")
        a(f"buffer_load_dword {v(tm)}, {v(o+3)}, s[92:95], s70 offen sc0 sc1")
        a("s_waitcnt vmcnt(0)")
        a(f"v_readfirstlane_b32 s71, {v(tm)}")
        a("s_sub_u32 s69, s69, 1")
        a("s_cmp_lg_u32 s69, 0")
        a(f"s_cbranch_scc1 {lp}")
        a.label(ok)
        a(f"v_mov_b32 {v(tm)}, s69")
        a(f"v_mov_b32 {v(tm+1)}, {hex(147456)}")
        a(f"ds_write_b32 {v(tm+1)}, {v(tm)}")
        a("s_waitcnt lgkmcnt(0)")
        a.label(nw)
        a("s_barrier")
        a(f"v_mov_b32 {v(tm+1)}, {hex(147456)}")
        a(f"ds_read_b32 {v(tm)}, {v(tm+1)}")
        a("s_waitcnt lgkmcnt(0)")
        a(f"v_readfirstlane_b32 s69, {v(tm)}")
        a("s_nop 3")
        a("s_cmp_lg_u32 s69, 0")
        a(f"s_cbranch_scc1 {go}")
        a("s_lshl_b32 s68, s28, 14")
        a("s_add_u32 s68, s68, s24")
        a("s_mov_b32 s69, 16")
        a.label(fl)
        loads(A, "s68")
        a("s_waitcnt vmcnt(0)")
        compute(A, "s68", A+40)
        a("s_waitcnt vmcnt(0)")
        a("s_add_u32 s68, s68, 1024")
        a("s_sub_u32 s69, s69, 1")
        a("s_cmp_lg_u32 s69, 0")
        a(f"s_cbranch_scc1 {fl}")
        a("s_barrier")
        a.label(go)
    def epi(a, c):
        acc, TM, TN, T = c['acc'], c['TM'], c['TN'], c['T']
        vo = c['alloc'](); tmp = c['fr'][0]
        a(f"v_lshlrev_b32 {v(vo)}, 5, {v(T)}")
        a(f"v_lshl_add_u32 {v(vo)}, {v(T+1)}, 4, {v(vo)}")
        a(f"s_mul_i32 s34, s39, {128*3584}")
        a(f"s_mul_i32 s54, s30, {TM*32*3584}")
        a("s_add_u32 s34, s34, s54")
        a("s_lshl_b32 s54, s38, 13")
        a("s_add_u32 s34, s34, s54")
        a("s_lshl_b32 s54, s29, 11")
        a("s_add_u32 s34, s34, s54")
        for mb in range(TM):
            g = acc + mb*16
            u = acc + (TM+mb)*16
            for i in range(16):
                a(f"v_max_f32 {v(g+i)}, 0, {v(g+i)}")
                a(f"v_mul_f32 {v(g+i)}, {v(g+i)}, {v(u+i)}")
            a(f"s_add_u32 s54, s34, {mb*32*3584}")
            store_bf16_perm(a, g, tmp + 8*mb, vo, 16, "s54", 0, gs=1024)
    P = dict(NW=8, WM=2, WN=4, TM=2, TN=2, NST=3, KT=8, lda=1024, ldb=3584, nsub=2, perm=False, nwg=224,
             setup=setup, epilogue=epi)
    return gemm_A(a, "k_gu_kernel", P)

def gen_down(a):
    name = "k_down_kernel"
    NST, KT = 2, 7
    lda, ldb = 3584, 1024
    kernel_begin(a, name)
    end = a.newlabel("end")
    a("s_cmp_ge_u32 s2, 256")
    a(f"s_cbranch_scc1 {end}")
    load_ptr(a, 40, 'wd'); load_ptr(a, 42, 'out'); load_ptr(a, 46, 'ws')
    a("s_and_b32 s35, s2, 7")
    a("s_lshr_b32 s36, s2, 3")
    a("s_lshl_b32 s39, s35, 2")
    a("s_lshr_b32 s37, s36, 3")
    a("s_add_u32 s39, s39, s37")
    a("s_and_b32 s38, s36, 7")
    a("v_and_b32 v1, 63, v0")
    a("v_lshrrev_b32 v2, 6, v0")
    a("s_nop 0")
    a("v_readfirstlane_b32 s28, v2")
    T = 4
    vXd, vWd = 16, 17
    a("s_mov_b32 s29, 0")
    xdma_voff(a, 1, "s29", vXd, 10, lda, True)
    a(f"v_xor_b32 v18, 0x800, {v(vXd)}")
    wdma_voff(a, 1, "s29", vWd, 10, ldb, 64)
    a(f"s_mul_i32 s24, s39, {64*lda}")
    a("s_lshl_b32 s54, s28, 12")
    a("s_add_u32 s24, s24, s54")
    a("s_lshl_b32 s25, s28, 16")
    a("s_lshl_b32 s54, s38, 7")
    a("s_add_u32 s25, s25, s54")
    a("s_lshl_b32 s33, s28, 15")
    a("s_waitcnt lgkmcnt(0)")
    make_srd(a, 4, 46, WS_ACT, 2048*3584)
    make_srd(a, 8, 40, 0, 1792*1024)
    xa = 20
    wa = [24, 25]
    def late():
        make_srd(a, 16, 42, 0, 2048*1024)
        make_srd(a, 12, 46, WS_X1, 2048*2048)
        make_srd(a, 20, 46, WS_MOD, 12288)
        lane_decomp(a, 1, T)
        xfrag_addrs(a, T, xa, 128, 0, "s33")
        for nb in range(2):
            wfrag_addr(a, T, wa[nb], 10, 128, True, nb, 8192)
            a(f"v_add_u32 {v(wa[nb])}, s33, {v(wa[nb])}")
    fr = [28, 44]
    acc = 60
    def dma(t):
        st = t % NST
        out = []
        for j in range(8):
            out.append([f"s_add_u32 m0, s33, {st*16384 + j*1024}",
                        f"s_add_u32 s34, s24, {t*16384 + (j>>2)*32*lda + (j&3)*256}",
                        f"buffer_load_dwordx4 {v(vXd if j%2==0 else 18)}, s[4:7], s34 offen lds"])
        for j in range(8):
            out.append([f"s_add_u32 m0, s33, {st*16384 + 8192 + j*1024}",
                        f"s_add_u32 s34, s25, {t*256*ldb + j*8*ldb}",
                        f"buffer_load_dwordx4 {v(vWd)}, s[8:11], s34 offen lds"])
        return out
    def reads(t, ks, f):
        st = t % NST
        for mb in range(2):
            a(f"ds_read_b128 {v(f+4*mb,4)}, {v(xa+ks)} offset:{st*16384+mb*4096}")
        for nb in range(2):
            for half in range(2):
                a(f"ds_read_b64_tr_b16 {v(f+8+4*nb+2*half,2)}, {v(wa[nb])} offset:{st*16384+16*ks*128+half*8*128}")
    for t in range(2):
        for g in dma(t):
            for i in g: a(i)
    late()
    for t in range(KT):
        a(f"s_waitcnt vmcnt({16 if t < KT-1 else 0})")
        reads(t, 0, fr[0])
        for ks in range(4):
            a("s_waitcnt lgkmcnt(0)")
            if ks < 3: reads(t, ks+1, fr[(ks+1)&1])
            f = fr[ks&1]
            for nb in range(2):
                for mb in range(2):
                    c = acc + (nb*2+mb)*16
                    src = "0" if (t == 0 and ks == 0) else v(c,16)
                    a(f"{MF} {v(c,16)}, {v(f+8+4*nb,4)}, {v(f+4*mb,4)}, {src}")
        if t+2 < KT:
            for g in dma(t+2):
                for i in g: a(i)
    a("s_nop 15")
    a("s_barrier")
    a("v_lshlrev_b32 v26, 4, v1")
    a("s_lshl_b32 s54, s28, 14")
    a("v_add_u32 v27, s54, v26")
    for tl in range(4):
        for q in range(4):
            a(f"ds_write_b128 v27, {v(acc+tl*16+4*q,4)} offset:{tl*4096+q*1024}")
    a("s_waitcnt lgkmcnt(0)")
    a("s_barrier")
    a("s_lshl_b32 s54, s28, 12")
    a("v_add_u32 v27, s54, v26")
    a("s_lshr_b32 s29, s28, 1")
    a("s_and_b32 s30, s28, 1")
    a("s_lshl_b32 s54, s39, 6")
    a("s_lshl_b32 s55, s30, 5")
    a("s_add_u32 s54, s54, s55")
    a("s_lshl_b32 s55, s38, 6")
    a("s_lshl_b32 s56, s29, 5")
    a("s_add_u32 s55, s55, s56")
    a("s_lshl_b32 s56, s54, 11")
    a("s_lshl_b32 s57, s55, 2")
    a("s_add_u32 s56, s56, s57")
    a("s_add_u32 s57, s57, 10240")
    a("s_lshr_b32 s58, s56, 1")
    a(f"v_lshlrev_b32 v10, 11, {v(T)}")
    a(f"v_lshl_add_u32 v10, {v(T+1)}, 4, v10")
    a(f"v_lshlrev_b32 v11, 4, {v(T+1)}")
    a("v_lshrrev_b32 v12, 1, v10")
    for q in range(4):
        a(f"buffer_load_dwordx4 {v(28+4*q,4)}, v10, s[12:15], s56 offen offset:{q*32}")
        a(f"buffer_load_dwordx4 {v(44+4*q,4)}, v11, s[20:23], s57 offen offset:{q*32}")
    for w in range(4):
        for q in range(4):
            a(f"ds_read_b128 {v(acc+w*16+4*q,4)}, v27 offset:{w*16384+q*1024}")
        if w == 2: a("s_waitcnt lgkmcnt(0)")
    a("s_waitcnt lgkmcnt(0)")
    for w in range(1, 4):
        for i in range(16):
            a(f"v_add_f32 {v(acc+i)}, {v(acc+i)}, {v(acc+16*w+i)}")
    a("s_waitcnt vmcnt(0)")
    for i in range(16):
        a(f"v_fmac_f32 {v(28+i)}, {v(acc+i)}, {v(44+i)}")
    for q in range(4):
        a(f"v_cvt_pk_bf16_f32 {v(acc+16+2*q)}, {v(28+4*q)}, {v(28+4*q+1)}")
        a(f"v_cvt_pk_bf16_f32 {v(acc+16+2*q+1)}, {v(28+4*q+2)}, {v(28+4*q+3)}")
        a(f"buffer_store_dwordx2 {v(acc+16+2*q,2)}, v12, s[16:19], s58 offen offset:{q*16}")
    a.label(end)
    a("s_endpgm")
    return name, acc+64, (256, 256, 131072)
```

```python
from common import *

def gen_mod(a):
    name = "k_mod_kernel"
    kernel_begin(a, name)
    a("s_cmp_ge_u32 s2, 48")
    a(f"s_cbranch_scc1 .Lmod_end")
    load_ptr(a, 4, 'c'); load_ptr(a, 6, 'wmod'); load_ptr(a, 8, 'ws')
    a("v_and_b32 v1, 7, v0")
    a("v_lshrrev_b32 v2, 3, v0")
    a("s_waitcnt lgkmcnt(0)")
    make_srd(a, 12, 4, 0, 1024)
    make_srd(a, 16, 6, 0, 512*6144)
    make_srd(a, 20, 8, WS_MOD, 12288)
    a("v_lshlrev_b32 v3, 5, v2")
    a("buffer_load_dwordx4 v[8:11], v3, s[12:15], 0 offen")
    a("buffer_load_dwordx4 v[12:15], v3, s[12:15], 0 offen offset:16")
    a("s_mov_b32 s24, 98304")
    a("v_mul_lo_u32 v4, v2, s24")
    a("v_lshl_add_u32 v4, v1, 4, v4")
    a("s_lshl_b32 s25, s2, 7")
    for j in range(16):
        a(f"s_add_u32 s26, s25, {j*6144}")
        a(f"buffer_load_dwordx4 {v(48+4*j,4)}, v4, s[16:19], s26 offen")
    a("s_waitcnt vmcnt(16)")
    unpack8(a, 8, 16); unpack8(a, 12, 24)
    for j in range(16):
        a(f"v_mul_f32 v5, 0xbfb8aa3b, {v(16+j)}")
        a("v_exp_f32 v5, v5")
        a("s_nop 0")
        a("v_add_f32 v5, 1.0, v5")
        a("v_rcp_f32 v5, v5")
        a("s_nop 0")
        a(f"v_mul_f32 v5, v5, {v(16+j)}")
        round_bf16(a, 16+j, 5)
    for i in range(8):
        a(f"v_mov_b32 {v(32+i)}, 0")
    for j in range(16):
        a(f"s_waitcnt vmcnt({15-j})")
        unpack8(a, 48+4*j, 40)
        for i in range(8):
            a(f"v_fmac_f32 {v(32+i)}, {v(40+i)}, {v(16+j)}")
    a("v_lshlrev_b32 v5, 8, v2")
    a("v_lshl_add_u32 v5, v1, 5, v5")
    a("ds_write_b128 v5, v[32:35]")
    a("ds_write_b128 v5, v[36:39] offset:16")
    a("s_waitcnt lgkmcnt(0)")
    a("s_barrier")
    a("v_cmp_gt_u32 vcc, 64, v0")
    a("s_and_saveexec_b64 s[28:29], vcc")
    a("s_cbranch_execz .Lmod_end")
    a("v_lshlrev_b32 v5, 2, v0")
    for j in range(32):
        a(f"ds_read_b32 {v(48+j)}, v5 offset:{j*256}")
        if j == 14: a("s_waitcnt lgkmcnt(0)")
        if j == 29: a("s_waitcnt lgkmcnt(0)")
    a("s_waitcnt lgkmcnt(0)")
    a("v_add_f32 v6, v48, v49")
    for j in range(2, 32):
        a(f"v_add_f32 v6, v6, {v(48+j)}")
    round_bf16(a, 6, 6)
    a("s_lshr_b32 s24, s2, 3")
    a("s_cmp_eq_u32 s24, 1")
    a("s_cselect_b32 s25, 1.0, 0")
    a("s_cmp_eq_u32 s24, 4")
    a("s_cselect_b32 s25, 1.0, s25")
    a("v_add_f32 v6, s25, v6")
    round_bf16(a, 6, 6)
    a("s_lshl_b32 s24, s2, 8")
    a("buffer_store_dword v6, v5, s[20:23], s24 offen")
    a.label(".Lmod_end")
    a("s_endpgm")
    return name, 112, (48, 256, 8192)

def gen_ln2(a, nsplit):
    name = "k_ln2_kernel"
    kernel_begin(a, name)
    a("s_cmp_ge_u32 s2, 512")
    a("s_cbranch_scc1 .Lln2_end")
    load_ptr(a, 4, 'x'); load_ptr(a, 6, 'ws')
    a("v_and_b32 v1, 63, v0")
    a("v_lshrrev_b32 v2, 6, v0")
    a("s_lshl_b32 s3, s2, 2")
    a("v_add_u32 v2, s3, v2")
    a("s_waitcnt lgkmcnt(0)")
    make_srd(a, 8, 4, 0, 2048*1024)
    make_srd(a, 12, 6, WS_MOD, 12288)
    make_srd(a, 16, 6, WS_PART, nsplit*2048*2048)
    make_srd(a, 20, 6, WS_X1, 2048*2048)
    make_srd(a, 24, 6, WS_H2, 2048*1024)
    a("v_lshlrev_b32 v3, 5, v1")
    a("v_lshl_add_u32 v4, v2, 11, v3")
    a("v_lshrrev_b32 v5, 1, v4")
    a("buffer_load_dwordx4 v[8:11], v5, s[8:11], 0 offen")
    a("s_mov_b32 s28, 4096")
    a("buffer_load_dwordx4 v[12:15], v3, s[12:15], s28 offen")
    a("buffer_load_dwordx4 v[16:19], v3, s[12:15], s28 offen offset:16")
    for p in range(nsplit):
        a(f"s_mov_b32 s29, {p*2048*2048}")
        a(f"buffer_load_dwordx4 {v(32+8*p,4)}, v4, s[16:19], s29 offen")
        a(f"buffer_load_dwordx4 {v(36+8*p,4)}, v4, s[16:19], s29 offen offset:16")
    a("s_waitcnt vmcnt(0)")
    unpack8(a, 8, 20)
    for p in range(1, nsplit):
        for i in range(8):
            a(f"v_add_f32 {v(32+i)}, {v(32+i)}, {v(32+8*p+i)}")
    for i in range(8):
        a(f"v_fmac_f32 {v(20+i)}, {v(32+i)}, {v(12+i)}")
    a("buffer_store_dwordx4 v[20:23], v4, s[20:23], 0 offen")
    a("buffer_store_dwordx4 v[24:27], v4, s[20:23], 0 offen offset:16")
    for i in range(8):
        a(f"v_mov_b32 {v(72+i)}, {v(20+i)}")
    ln_row(a, 72, 80, 12, 3, 1536, 2048, 8)
    a("buffer_store_dwordx4 v[8:11], v5, s[24:27], 0 offen")
    a.label(".Lln2_end")
    a("s_endpgm")
    return name, 104, (512, 256, 0)

def gen_ln2b(a, NS=8):
    name = "k_ln2_kernel"
    kernel_begin(a, name)
    a("s_cmp_ge_u32 s2, 512")
    a("s_cbranch_scc1 .Lln2_end")
    load_ptr(a, 4, 'x'); load_ptr(a, 6, 'ws')
    import os
    LPF = int(os.environ.get('LPF', '0'))
    a("v_and_b32 v1, 63, v0")
    a("v_lshrrev_b32 v2, 6, v0")
    if LPF:
        a("s_load_dwordx4 s[32:35], s[0:1], 56")
        a("s_load_dwordx2 s[36:37], s[0:1], 72")
        a("v_and_b32 v7, 7, v1")
        a("v_min_u32 v7, 6, v7")
        a("v_mad_u32_u24 v7, v2, 7, v7")
        a("v_lshlrev_b32 v7, 7, v7")
        a("s_mul_i32 s38, s2, 3584")
    a("s_lshl_b32 s3, s2, 12")
    a("v_lshlrev_b32 v2, 10, v2")
    import os
    PB = int(os.environ.get('PB', '1'))
    if PB:
        a("v_lshrrev_b32 v3, 1, v1")
        a("v_lshlrev_b32 v3, 10, v3")
        a("v_and_b32 v4, 1, v1")
        a("v_lshl_add_u32 v3, v4, 4, v3")
        a("v_lshrrev_b32 v4, 5, v2")
        a("v_add_u32 v3, v3, v4")
        a("s_lshr_b32 s31, s2, 3")
        a("s_lshl_b32 s31, s31, 15")
        a("s_and_b32 s29, s2, 7")
        a("s_lshl_b32 s29, s29, 7")
        a("s_add_u32 s31, s31, s29")
    else:
        a("v_lshl_add_u32 v3, v1, 4, v2")
        a("s_mov_b32 s31, s3")
    a("v_and_b32 v4, 1, v1")
    a("v_lshlrev_b32 v4, 3, v4")
    a("v_and_b32 v5, 62, v1")
    a("v_lshl_add_u32 v4, v5, 4, v4")
    a("v_lshlrev_b32 v5, 1, v4")
    a("v_add_u32 v4, v4, v2")
    a("v_lshlrev_b32 v6, 1, v4")
    a("s_waitcnt lgkmcnt(0)")
    make_srd(a, 16, 6, WS_PART, NS*2048*1024)
    for p in range(NS):
        if p: a(f"s_add_u32 s29, s31, {p*2048*1024}")
        a(f"buffer_load_dwordx4 {v(76+4*p,4)}, v3, s[16:19], {'s29' if p else 's31'} offen")
    make_srd(a, 8, 4, 0, 2048*1024)
    a("buffer_load_dwordx2 v[8:9], v4, s[8:11], s3 offen")
    a("buffer_load_dwordx2 v[10:11], v4, s[8:11], s3 offen offset:16")
    make_srd(a, 12, 6, WS_MOD, 12288)
    MV = 32
    for j, col in enumerate((1024, 1536, 2048)):
        a(f"s_movk_i32 s28, {col*4}")
        a(f"buffer_load_dwordx4 {v(MV+8*j,4)}, v5, s[12:15], s28 offen")
        a(f"buffer_load_dwordx4 {v(MV+8*j+4,4)}, v5, s[12:15], s28 offen offset:32")
    for j in range(LPF):
        make_srd(a, 40, 32+2*j, 0, 512*1792*2)
        a("buffer_load_dword v16, v7, s[40:43], s38 offen")
    make_srd(a, 20, 6, WS_X1, 2048*2048)
    make_srd(a, 24, 6, WS_H2, 2048*1024)
    a("s_lshl_b32 s30, s3, 1")
    X, S, tm = 56, 64, 72
    for i in range(8): a(f"v_mov_b32 {v(S+i)}, 0")
    for p in range(NS):
        a(f"s_waitcnt vmcnt({7+NS-p+LPF})")
        for i in range(8):
            a(f"v_fma_mix_f32 {v(S+i)}, {v(76+4*p+i//2)}, 1.0, {v(S+i)} op_sel:[{i&1},0,0] op_sel_hi:[1,0,0]")
    a(f"s_waitcnt vmcnt({4+LPF})")
    unpack8(a, 8, X)
    for i in range(8): a(f"v_fmac_f32 {v(X+i)}, {v(S+i)}, {v(MV+i)}")
    a(f"buffer_store_dwordx4 {v(X,4)}, v6, s[20:23], s30 offen")
    a(f"buffer_store_dwordx4 {v(X+4,4)}, v6, s[20:23], s30 offen offset:32")
    sm, tt, va = tm, tm+1, tm+2
    a(f"v_add_f32 {v(sm)}, {v(X)}, {v(X+1)}")
    for i in range(2, 8): a(f"v_add_f32 {v(sm)}, {v(sm)}, {v(X+i)}")
    wave_sum(a, sm, tt)
    a(f"v_mul_f32 {v(sm)}, 0x3b000000, {v(sm)}")
    for i in range(8): a(f"v_sub_f32 {v(S+i)}, {v(X+i)}, {v(sm)}")
    a(f"v_mul_f32 {v(va)}, {v(S)}, {v(S)}")
    for i in range(1, 8): a(f"v_fmac_f32 {v(va)}, {v(S+i)}, {v(S+i)}")
    wave_sum(a, va, tt)
    a(f"v_mov_b32 {v(tt)}, 0x3727c5ac")
    a(f"v_fmac_f32 {v(tt)}, 0x3b000000, {v(va)}")
    a(f"v_rsq_f32 {v(tt)}, {v(tt)}")
    a(f"s_waitcnt vmcnt({2+LPF})")
    for i in range(8): a(f"v_mul_f32 {v(S+i)}, {v(S+i)}, {v(tt)}")
    for i in range(8): a(f"v_fma_f32 {v(S+i)}, {v(S+i)}, {v(MV+16+i)}, {v(MV+8+i)}")
    for i in range(4): a(f"v_cvt_pk_bf16_f32 {v(12+i)}, {v(S+2*i)}, {v(S+2*i+1)}")
    a("buffer_store_dwordx2 v[12:13], v4, s[24:27], s3 offen")
    a("buffer_store_dwordx2 v[14:15], v4, s[24:27], s3 offen offset:16")
    a.label(".Lln2_end")
    a("s_endpgm")
    return name, 76+4*NS, (512, 256, 0)
```

```python
from common import *
from gemm import *
import os

def store_bf16_perm(a, c, tmp, voff, srd, soff, imm, cvt="v_cvt_pk_bf16_f32", gs=32, pol=""):
    for g in range(2):
        t = tmp + 4*g
        for i in range(4):
            a(f"{cvt} {v(t+i)}, {v(c+8*g+2*i)}, {v(c+8*g+2*i+1)}")
        a(f"buffer_store_dwordx4 {v(t,4)}, {v(voff)}, {s(srd,4)}, {soff} offen offset:{imm+gs*g}{pol}")

def gen_kv(a):
    def setup(a, ph):
        if ph == 0:
            load_ptr(a, 40, 'ckv'); load_ptr(a, 42, 'wuk'); load_ptr(a, 44, 'wuv'); load_ptr(a, 46, 'ws'); load_ptr(a, 48, 'x')
            load_ptr(a, 72, 'c'); load_ptr(a, 76, 'wmod'); load_ptr(a, 92, 'dbg'); load_ptr(a, 100, 'wq')
            a("s_and_b32 s35, s2, 7")
            a("s_lshr_b32 s36, s2, 3")
            a("s_and_b32 s37, s36, 1")
            a("s_lshl_b32 s38, s35, 1")
            a("s_add_u32 s37, s37, s38")
            if os.environ.get('FLIPKV'): a("s_xor_b32 s37, s37, 2")
            a("s_bfe_u32 s38, s36, 0x10001")
            a("s_lshr_b32 s39, s36, 2")
        if ph == 1:
            make_srd(a, 4, 40, 0, 2048*1024)
            a("s_cmp_eq_u32 s38, 1")
            a("s_cselect_b32 s50, s44, s42")
            a("s_cselect_b32 s51, s45, s43")
            make_srd(a, 8, 50, 0, 512*8192)
            a("s_lshl_b32 s24, s39, 18")
            a("s_lshl_b32 s25, s37, 9")
            make_srd(a, 56, 48, 0, 2048*1024)
            make_srd(a, 72, 72, 0, 1024)
            make_srd(a, 76, 76, 0, 512*6144)
        if ph == 2:
            a(f"s_mul_i32 s52, s38, {WS_V-WS_K}")
            a("s_add_u32 s52, s46, s52")
            a("s_addc_u32 s53, s47, 0")
            make_srd(a, 16, 52, WS_K, 32*2048*256)
            make_srd(a, 60, 46, WS_MOD, 12288)
            make_srd(a, 64, 46, WS_H, 2048*1024)
            make_srd(a, 92, 92, 0, 256)
    st = {}
    NEED = int(os.environ.get('NEED', '64'))
    T1 = int(os.environ.get('T1', '0'))
    PT = int(os.environ.get('PT', '0'))
    WQ = int(os.environ.get('WQ', '5'))
    WO = int(os.environ.get('WO', '0'))
    S1 = int(os.environ.get('S1', '2'))
    N0 = 2 if S1 else 1
    LATE = int(os.environ.get('LATE', '0'))
    def pre(a, c):
        t = c['alloc'](40, 4); st['t'] = t
        a("s_lshl_b32 s68, s2, 3")
        a("s_add_u32 s68, s68, s28")
        a("s_lshl_b32 s68, s68, 10")
        if not LATE: pre2(a)
    def pre2(a):
        t = st['t']
        a(f"v_lshlrev_b32 {v(t)}, 4, v1")
        a(f"v_lshlrev_b32 {v(t+1)}, 5, v1")
        a(f"buffer_load_dwordx4 {v(t+4,4)}, {v(t)}, s[56:59], s68 offen")
        a("s_min_u32 s69, s36, 23")
        a("s_mul_i32 s70, s35, 24")
        a("s_add_u32 s69, s69, s70")
        a(f"v_lshrrev_b32 {v(t+2)}, 2, v0")
        a(f"v_lshlrev_b32 {v(t+3)}, 3, {v(t+2)}")
        a(f"buffer_load_dwordx2 {v(t+16,2)}, {v(t+3)}, s[72:75], 0 offen")
        a(f"v_mul_u32_u24 {v(t+2)}, {4*6144}, {v(t+2)}")
        a(f"v_and_b32 {v(t+3)}, 3, v0")
        a(f"v_lshl_add_u32 {v(t+2)}, {v(t+3)}, 3, {v(t+2)}")
        a("s_lshl_b32 s70, s69, 5")
        for j in range(4):
            a(f"buffer_load_dwordx2 {v(t+20+2*j,2)}, {v(t+2)}, s[76:79], s70 offen")
            if j < 3: a(f"s_add_u32 s70, s70, 6144")
    def silu_bf(a, d, x, tmp):
        a(f"v_mul_f32 {v(tmp)}, 0xbfb8aa3b, {v(x)}")
        a(f"v_exp_f32 {v(tmp)}, {v(tmp)}")
        a("s_nop 0")
        a(f"v_add_f32 {v(tmp)}, 1.0, {v(tmp)}")
        a(f"v_rcp_f32 {v(tmp)}, {v(tmp)}")
        a("s_nop 0")
        a(f"v_mul_f32 {v(tmp)}, {v(tmp)}, {v(x)}")
        round_bf16(a, d, tmp)
    def mid(a, c):
        t = st['t']
        if T1 == 0: pf_0(a)
        if LATE == 1:
            pre2(a)
            return N0 + 6
        if LATE: return N0
        a(f"s_waitcnt vmcnt({c['L']*c['NST'] + (T1 == 0)*N0})")
        mid2(a)
        a("s_waitcnt lgkmcnt(0)")
        return int(T1 == 0)*N0
    def midchunk(i, n=8):
        def f(a):
            b = Asm(); mid2(b)
            L_ = b.lines; m = (len(L_) + n - 1)//n
            a.lines.extend(L_[i*m:(i+1)*m])
        return f
    def mid2(a):
        t = st['t']
        for i in range(2):
            a(f"v_lshlrev_b32 {v(t+28+2*i)}, 16, {v(t+16+i)}")
            a(f"v_and_b32 {v(t+29+2*i)}, 0xffff0000, {v(t+16+i)}")
        for j in range(4): silu_bf(a, t+28+j, t+28+j, t+36)
        for j in range(4):
            for i in range(2):
                a(f"v_lshlrev_b32 {v(t+36)}, 16, {v(t+20+2*j+i)}")
                a(f"v_and_b32 {v(t+37)}, 0xffff0000, {v(t+20+2*j+i)}")
                op = "v_mul_f32" if j == 0 else "v_fmac_f32"
                a(f"{op} {v(t+32+2*i)}, {v(t+36)}, {v(t+28+j)}")
                a(f"{op} {v(t+33+2*i)}, {v(t+37)}, {v(t+28+j)}")
        a("s_nop 1")
        for ror in (8, 4):
            for i in range(4):
                a(f"v_add_f32_dpp {v(t+32+i)}, {v(t+32+i)}, {v(t+32+i)} row_ror:{ror} row_mask:0xf bank_mask:0xf")
        for sw in ("v_permlane16_swap_b32", "v_permlane32_swap_b32"):
            for i in range(4): a(f"v_mov_b32 {v(t+36+i)}, {v(t+32+i)}")
            a("s_nop 1")
            for i in range(4): a(f"{sw} {v(t+32+i)}, {v(t+36+i)}")
            a("s_nop 1")
            for i in range(4): a(f"v_add_f32 {v(t+32+i)}, {v(t+32+i)}, {v(t+36+i)}")
        a("s_lshl_b32 s85, s28, 6")
        a("s_add_u32 s85, s85, 147456")
        a(f"v_lshlrev_b32 {v(t+3)}, 4, {v(t+3)}")
        a(f"v_add_u32 {v(t+3)}, s85, {v(t+3)}")
        a(f"ds_write_b128 {v(t+3)}, {v(t+32,4)}")
        X = t+8; sm, tt, va = t+16, t+17, t+18
        unpack8(a, t+4, X)
        a(f"v_add_f32 {v(sm)}, {v(X)}, {v(X+1)}")
        for i in range(2, 8): a(f"v_add_f32 {v(sm)}, {v(sm)}, {v(X+i)}")
        wave_sum(a, sm, tt)
        a(f"v_mul_f32 {v(sm)}, 0x3b000000, {v(sm)}")
        for i in range(8): a(f"v_sub_f32 {v(X+i)}, {v(X+i)}, {v(sm)}")
        a(f"v_mul_f32 {v(va)}, {v(X)}, {v(X)}")
        for i in range(1, 8): a(f"v_fmac_f32 {v(va)}, {v(X+i)}, {v(X+i)}")
        wave_sum(a, va, tt)
        a(f"v_mov_b32 {v(tt)}, 0x3727c5ac")
        a(f"v_fmac_f32 {v(tt)}, 0x3b000000, {v(va)}")
        a(f"v_rsq_f32 {v(tt)}, {v(tt)}")
        a("s_nop 0")
        for i in range(8): a(f"v_mul_f32 {v(X+i)}, {v(X+i)}, {v(tt)}")
    def pf_w(a, r, sub, half=None):
        x = st['t']+19
        a("s_cmp_ge_u32 s68, 0x100000")
        a("s_cselect_b32 s96, s44, s42")
        a("s_cselect_b32 s97, s45, s43")
        make_srd(a, 96, 96, 0, 4 << 20)
        a("s_and_b32 s70, s68, 0xfffff")
        a("s_lshl_b32 s70, s70, 2")
        a(f"v_bfe_u32 {v(r)}, v1, 1, {3 if half is None else 2}")
        a(f"v_lshlrev_b32 {v(r)}, 9, {v(r)}")
        a(f"v_and_b32 {v(r+1)}, 1, v1")
        a(f"v_lshl_add_u32 {v(r)}, {v(r+1)}, 7, {v(r)}")
        a(f"buffer_load_dword {v(x)}, {v(r)}, s[96:99], s70 offen offset:{sub*256 + (half or 0)*2048}")
    def pf_0(a):
        if S1:
            t = st['t']
            pf_w(a, 14, 0)
            a("v_and_b32 v9, 7, v1")
            a("v_lshlrev_b32 v9, 7, v9")
            a(f"buffer_load_dword {v(t+19)}, v9, s[4:7], s68 offen")
            return
        a("s_lshr_b32 s70, s68, 10")
        if WQ:
            a("s_cmp_ge_u32 s70, 1280")
            a("s_cselect_b32 s71, 1280, 0")
            a("s_sub_u32 s70, s70, s71")
        touch(a, 96, [(42, 4 << 20), (44, 4 << 20), (40, 2 << 20)] + ([] if WQ else [(100, 4 << 20)]), 70, 71, st['t']+19)
    def pf_q(a, half=None):
        x = st['t']+19
        make_srd(a, 96, 100, 0, 4 << 20)
        a("s_lshl_b32 s70, s68, 1")
        a(f"v_and_b32 v12, {15 if half is None else 7}, v1")
        a("v_lshlrev_b32 v12, 7, v12")
        a(f"buffer_load_dword {v(x)}, v12, s[96:99], s70 offen offset:{(half or 0)*1024}")
    def pf_o(a):
        x = st['t']+19
        make_srd(a, 96, 40, 0, 4 << 20)
        a("s_lshl_b32 s70, s68, 1")
        a(f"buffer_load_dword {v(x)}, {v(x-3)}, s[96:99], s70 offen")
    def pf_m(ptrs):
        def f(a):
            x = st['t']+19
            a("s_lshr_b32 s70, s68, 10")
            a("s_mul_i32 s70, s70, 896")
            a(f"v_and_b32 {v(x-2)}, 7, v1")
            a(f"v_min_u32 {v(x-2)}, 6, {v(x-2)}")
            a(f"v_lshlrev_b32 {v(x-2)}, 7, {v(x-2)}")
            for p in ptrs:
                make_srd(a, 96, p, 0, 512*1792*2)
                a(f"buffer_load_dword {v(x)}, {v(x-2)}, s[96:99], s70 offen")
        return f
    def pf_a(a):
        a("s_load_dwordx8 s[40:47], s[0:1], 40")
        a("s_load_dwordx2 s[48:49], s[0:1], 72")
    def pf_b(a):
        a("s_lshr_b32 s70, s68, 10")
        touch(a, 96, [(40, 4 << 20), (44, 512*1792*2), (46, 512*1792*2), (48, 512*1792*2)], 70, 71, st['t']+19)
    def h0(a):
        t = st['t']; sk = a.newlabel("sk")
        if T1 == 1: pf_0(a)
        a("s_cmp_lg_u32 s28, 0")
        a(f"s_cbranch_scc1 {sk}")
        a("s_cmp_ge_u32 s36, 24")
        a(f"s_cbranch_scc1 {sk}")
        a(f"v_and_b32 {v(t+2)}, 15, v1")
        a(f"v_lshlrev_b32 {v(t+2)}, 2, {v(t+2)}")
        a(f"v_add_u32 {v(t+3)}, 0x24000, {v(t+2)}")
        for w in range(8): a(f"ds_read_b32 {v(t+20+w)}, {v(t+3)} offset:{w*64}")
        a("s_waitcnt lgkmcnt(0)")
        for w in range(1, 8): a(f"v_add_f32 {v(t+20)}, {v(t+20)}, {v(t+20+w)}")
        round_bf16(a, t+20, t+20)
        a("s_lshr_b32 s70, s69, 5")
        a("s_cmp_eq_u32 s70, 1")
        a("s_cselect_b32 s71, 1.0, 0")
        a("s_cmp_eq_u32 s70, 4")
        a("s_cselect_b32 s71, 1.0, s71")
        a(f"v_add_f32 {v(t+20)}, s71, {v(t+20)}")
        round_bf16(a, t+20, t+20)
        a("s_lshl_b32 s70, s69, 6")
        a(f"buffer_store_dword {v(t+20)}, {v(t+2)}, s[60:63], s70 offen sc0 sc1")
        a.label(sk)
    def h1(a):
        t = st['t']; sk = a.newlabel("sk")
        a("s_cmp_lg_u32 s28, 0")
        a(f"s_cbranch_scc1 {sk}")
        a("s_cmp_ge_u32 s36, 24")
        a(f"s_cbranch_scc1 {sk}")
        a("s_cmp_ge_u32 s69, 64")
        a(f"s_cbranch_scc1 {sk}")
        a(f"v_mov_b32 {v(t+2)}, 0")
        a(f"v_mov_b32 {v(t+3)}, 1")
        a("s_mov_b64 exec, 1")
        a(f"buffer_atomic_add {v(t+3)}, {v(t+2)}, s[92:95], 0 offen sc1")
        a("s_mov_b64 exec, -1")
        a.label(sk)
    def h5(a):
        t = st['t']
        a(f"v_mov_b32 {v(t+2)}, 0")
        a(f"buffer_load_dword {v(t+3)}, {v(t+2)}, s[92:95], 0 offen sc0 sc1")
    def h6(a):
        t = st['t']; ok = a.newlabel("ok"); lp = a.newlabel("lp"); dn = a.newlabel("dn"); fl = a.newlabel("fl")
        G, S = t+20, t+28
        a("s_movk_i32 s71, 0x2000")
        a(f"s_waitcnt vmcnt({int(PT == 13)})")
        a.label(lp)
        a(f"v_readfirstlane_b32 s70, {v(t+3)}")
        a("s_nop 3")
        a(f"s_cmp_ge_u32 s70, {NEED}")
        a(f"s_cbranch_scc1 {ok}")
        a("s_sleep 4")
        a(f"buffer_load_dword {v(t+3)}, {v(t+2)}, s[92:95], 0 offen sc0 sc1")
        a("s_waitcnt vmcnt(0)")
        a("s_sub_u32 s71, s71, 1")
        a("s_cmp_lg_u32 s71, 0")
        a(f"s_cbranch_scc1 {lp}")
        for i in range(16): a(f"v_mov_b32 {v(G+i)}, 0")
        a("s_mov_b32 s70, 0")
        a("s_mov_b32 s71, 0")
        a.label(fl)
        a(f"buffer_load_ushort {v(t+16)}, {v(t+2)}, s[72:75], s70 offen")
        for dst, off in ((S, 0), (G, 1024)):
            a(f"buffer_load_dwordx4 {v(t+36,4)}, {v(t)}, s[76:79], s71 offen offset:{off}")
            a("s_waitcnt vmcnt(0)")
            if off == 0:
                a(f"v_lshlrev_b32 {v(t+16)}, 16, {v(t+16)}")
                silu_bf(a, t+16, t+16, t+17)
            for i in range(4):
                a(f"v_lshlrev_b32 {v(t+17)}, 16, {v(t+36+i)}")
                a(f"v_and_b32 {v(t+18)}, 0xffff0000, {v(t+36+i)}")
                a(f"v_fmac_f32 {v(dst+2*i)}, {v(t+17)}, {v(t+16)}")
                a(f"v_fmac_f32 {v(dst+2*i+1)}, {v(t+18)}, {v(t+16)}")
        a("s_add_u32 s70, s70, 2")
        a("s_add_u32 s71, s71, 6144")
        a("s_cmp_lt_u32 s70, 1024")
        a(f"s_cbranch_scc1 {fl}")
        for i in range(16): round_bf16(a, G+i, G+i)
        for i in range(8):
            a(f"v_add_f32 {v(G+i)}, 1.0, {v(G+i)}")
            round_bf16(a, G+i, G+i)
        a(f"s_branch {dn}")
        a.label(ok)
        a(f"buffer_load_dwordx4 {v(G,4)}, {v(t+1)}, s[60:63], 0 offen offset:2048 sc0 sc1")
        a(f"buffer_load_dwordx4 {v(G+4,4)}, {v(t+1)}, s[60:63], 0 offen offset:2064 sc0 sc1")
        a(f"buffer_load_dwordx4 {v(S,4)}, {v(t+1)}, s[60:63], 0 offen sc0 sc1")
        a(f"buffer_load_dwordx4 {v(S+4,4)}, {v(t+1)}, s[60:63], 0 offen offset:16 sc0 sc1")
        a.label(dn)
    def h7(a):
        t = st['t']; X = t+8; G, S = t+20, t+28
        for i in range(8): a(f"v_fma_f32 {v(X+i)}, {v(X+i)}, {v(G+i)}, {v(S+i)}")
        for i in range(4): a(f"v_cvt_pk_bf16_f32 {v(t+4+i)}, {v(X+2*i)}, {v(X+2*i+1)}")
        a(f"buffer_store_dwordx4 {v(t+4,4)}, {v(t)}, s[64:67], s68 offen")
    def init(a, c):
        T = c['T']
        st['acc'] = c['acc']
        vo = c['alloc'](); st['vo'] = vo; st['tmp'] = c['alloc'](16, 4)
        a(f"v_lshlrev_b32 {v(vo)}, 5, {v(T)}")
        a(f"v_lshl_add_u32 {v(vo)}, {v(T+1)}, 4, {v(vo)}")
        a("s_lshl_b32 s84, s39, 16")
        a("s_lshl_b32 s54, s30, 14")
        a("s_add_u32 s84, s84, s54")
        a("s_lshl_b32 s54, s37, 20")
        a("s_add_u32 s84, s84, s54")
        a("s_lshl_b32 s54, s29, 12")
        a("s_add_u32 s84, s84, s54")
    def part(a, sub, mb, nb, pol=""):
        a(f"s_add_u32 s54, s84, {mb*32*256 + sub*2048*256}")
        store_bf16_perm(a, st['acc'] + sub*64 + (nb*2+mb)*16, st['tmp'] + 8*(nb&1), st['vo'], 16, "s54", nb*2048, gs=1024, pol=pol)
    def epi(a, c):
        for mb in range(2):
            for nb in range(2): part(a, 1, mb, nb)
        a("s_waitcnt vmcnt(8)")
        h7(a)
    POL = os.environ.get('KVPOL', '')
    def seq(*fs):
        def f(a):
            for x in fs: x(a)
        return f
    pp = lambda mb, nb: (lambda a: part(a, 0, mb, nb, POL))
    P = dict(NW=8, WM=4, WN=2, TM=2, TN=2, NST=3, KT=8, nseq=2, lda=1024, ldb=8192, nsub=1, perm=False, nwg=256,
             setup=setup, epilogue=epi, mid=mid, pre=pre, xlds=512, init=init,
             xw={13: 1, 14: 1},
             hooks={0: h0, 3: h1, 9: pp(0,0), 10: pp(0,1), 11: pp(1,0), 12: pp(1,1), (13,1): h5, (15,1): h6})
    P['xw'][0] = N0
    if LATE:
        D_ = LATE - 1
        del P['hooks'][0]; del P['hooks'][3]
        if D_: P['hooks'][D_] = pre2; P['xw'][D_] = 6
        else: P['xw'][0] = N0 + 6
        P['hooks'][4+D_] = h0; P['hooks'][6+D_] = h1
        for i in range(8): P['hooks'][(2 + D_ + i//4, i % 4)] = midchunk(i)
    def addhook(t, f):
        P['hooks'][t] = seq(P['hooks'][t], f) if t in P['hooks'] else f
        P['xw'][t] = P['xw'].get(t, 0) + 1
    SPL = int(os.environ.get('SPL', '1'))
    if SPL:
        for h in range(2):
            addhook(S1+h, lambda a, h=h: pf_w(a, 14, 1, h))
            addhook(WQ+h, lambda a, h=h: pf_q(a, h))
        WQ = 0
    elif S1: P['hooks'][S1] = lambda a: pf_w(a, 14, 1); P['xw'][S1] = 1
    if WQ: P['hooks'][WQ] = pf_q; P['xw'][WQ] = 1
    if WO:
        P['hooks'][(WO-1, 1)] = pf_a; P['hooks'][WO] = pf_o; P['xw'][WO] = 1
        P['hooks'][WO+1] = pf_m([44, 46]); P['xw'][WO+1] = 2
        P['hooks'][WO+2] = pf_m([48]); P['xw'][WO+2] = 1
    P['prepos'] = int(os.environ.get('PREPOS', '0'))
    if PT == 13:
        P['hooks'][(12, 1)] = pf_a; P['hooks'][(13, 2)] = pf_b; P['xw'][13] = 2; P['xw'][14] = 2
    elif PT:
        P['hooks'][(PT-1, 1)] = pf_a; P['hooks'][PT] = pf_b; P['xw'][PT] = 1
    return gemm_A(a, "k_kv_kernel", P)

def gen_oproj4(a):
    def setup(a, ph):
        if ph == 0:
            load_ptr(a, 40, 'wo'); load_ptr(a, 46, 'ws')
            a("s_and_b32 s35, s2, 7")
            a("s_lshr_b32 s36, s2, 3")
            a("s_lshr_b32 s37, s35, 1")
            if os.environ.get('FLIP'): a("s_xor_b32 s37, s37, 1")
            a("s_and_b32 s38, s35, 1")
            a("s_lshl_b32 s38, s38, 3")
            a("s_lshr_b32 s39, s36, 2")
            a("s_add_u32 s39, s39, s38")
            a("s_and_b32 s38, s36, 3")
        if ph == 1:
            make_srd(a, 4, 46, WS_CTX, 2048*8192)
            make_srd(a, 8, 40, 0, 4096*1024)
            a("s_lshl_b32 s24, s39, 20")
            a("s_lshl_b32 s54, s37, 16")
            a("s_add_u32 s24, s24, s54")
            a("s_lshl_b32 s25, s37, 20")
            a("s_lshl_b32 s54, s38, 8")
            a("s_add_u32 s25, s25, s54")
        if ph == 2:
            make_srd(a, 16, 46, WS_PART, 4*2048*1024)
    def epi(a, c):
        acc, TM, TN, T = c['acc'], c['TM'], c['TN'], c['T']
        vo = c['alloc'](); tmp = c['fr'][0]
        PB = int(os.environ.get('PB', '1'))
        a(f"v_lshlrev_b32 {v(vo)}, {5 if PB else 10}, {v(T)}")
        a(f"v_lshl_add_u32 {v(vo)}, {v(T+1)}, 4, {v(vo)}")
        a("s_lshl_b32 s34, s37, 21")
        a("s_lshl_b32 s54, s39, 17")
        a("s_add_u32 s34, s34, s54")
        a(f"s_mul_i32 s54, s30, {TM*32*1024}")
        a("s_add_u32 s34, s34, s54")
        a(f"s_lshl_b32 s54, s38, {13 if PB else 8}")
        a("s_add_u32 s34, s34, s54")
        a(f"s_mul_i32 s54, s29, {TN*32*2*(32 if PB else 1)}")
        a("s_add_u32 s34, s34, s54")
        kk = 0
        for mb in range(TM):
            a(f"s_add_u32 s54, s34, {mb*32*1024}")
            for nb in range(TN):
                store_bf16_perm(a, acc+(nb*TM+mb)*16, tmp + 8*(kk % 4), vo, 16, "s54", nb*(2048 if PB else 64), "v_cvt_pkrtz_f16_f32", gs=(1024 if PB else 32))
                kk += 1
    P = dict(NW=4, WM=2, WN=2, TM=2, TN=2, NST=4, KT=16, lda=8192, ldb=1024, nsub=1, perm=False, nwg=256, xblk=True,
             setup=setup, epilogue=epi)
    return gemm_A(a, "k_oproj_kernel", P)

def gen_oproj(a):
    def setup(a, ph):
        if ph == 0:
            load_ptr(a, 40, 'wo'); load_ptr(a, 46, 'ws')
            a("s_and_b32 s37, s2, 7")
            a("s_lshr_b32 s36, s2, 3")
            a("s_lshr_b32 s39, s36, 2")
            a("s_and_b32 s38, s36, 3")
        if ph == 1:
            make_srd(a, 4, 46, WS_CTX, 2048*8192)
            make_srd(a, 8, 40, 0, 4096*1024)
            a("s_lshl_b32 s24, s39, 21")
            a("s_lshl_b32 s54, s37, 15")
            a("s_add_u32 s24, s24, s54")
            a("s_lshl_b32 s25, s37, 19")
            a("s_lshl_b32 s54, s38, 8")
            a("s_add_u32 s25, s25, s54")
        if ph == 2:
            make_srd(a, 16, 46, WS_PART, 8*2048*1024)
    def epi(a, c):
        acc, TM, TN, T = c['acc'], c['TM'], c['TN'], c['T']
        vo = c['alloc'](); tmp = c['fr'][0]
        a(f"v_lshlrev_b32 {v(vo)}, 5, {v(T)}")
        a(f"v_lshl_add_u32 {v(vo)}, {v(T+1)}, 4, {v(vo)}")
        a("s_lshl_b32 s34, s37, 21")
        a("s_lshl_b32 s54, s39, 18")
        a("s_add_u32 s34, s34, s54")
        a(f"s_mul_i32 s54, s30, {TM*32*1024}")
        a("s_add_u32 s34, s34, s54")
        a(f"s_lshl_b32 s54, s38, 13")
        a("s_add_u32 s34, s34, s54")
        a(f"s_mul_i32 s54, s29, {TN*32*2*32}")
        a("s_add_u32 s34, s34, s54")
        kk = 0
        for mb in range(TM):
            a(f"s_add_u32 s54, s34, {mb*32*1024}")
            for nb in range(TN):
                store_bf16_perm(a, acc+(nb*TM+mb)*16, tmp + 8*(kk % 4), vo, 16, "s54", nb*2048, "v_cvt_pkrtz_f16_f32", gs=1024)
                kk += 1
    P = dict(NW=8, WM=4, WN=2, TM=2, TN=2, NST=3, KT=8, lda=8192, ldb=1024, nsub=1, perm=False, nwg=256, xblk=True,
             setup=setup, epilogue=epi)
    return gemm_A(a, "k_oproj_kernel", P)

def gen_gu(a):
    def setup(a, ph):
        if ph == 0:
            load_ptr(a, 40, 'wg'); load_ptr(a, 42, 'wu'); load_ptr(a, 46, 'ws')
            a("s_and_b32 s35, s2, 7")
            a("s_lshr_b32 s36, s2, 3")
            a("s_mul_i32 s37, s36, 37")
            a("s_lshr_b32 s37, s37, 8")
            a("s_mul_i32 s38, s37, 7")
            a("s_sub_u32 s38, s36, s38")
            a("s_lshr_b32 s39, s35, 1")
            a("s_lshl_b32 s39, s39, 2")
            a("s_add_u32 s39, s39, s37")
            a("s_and_b32 s54, s35, 1")
            a("s_mul_i32 s54, s54, 7")
            a("s_add_u32 s38, s38, s54")
        if ph == 1:
            make_srd(a, 4, 46, WS_H2, 2048*1024)
            make_srd(a, 8, 40, 0, 512*3584)
            make_srd(a, 12, 42, 0, 512*3584)
            a("s_lshl_b32 s24, s39, 17")
            a("s_lshl_b32 s25, s38, 8")
            a("s_mov_b32 s26, s25")
        if ph == 2:
            make_srd(a, 16, 46, WS_ACT, 2048*3584)
    NEED2 = int(os.environ.get('NEED2', '14'))
    def sync(a, c):
        A = c['acc']
        MV = c['alloc'](24, 4)
        o = c['alloc'](4, 4)
        tm = c['alloc'](4, 4)
        a(f"v_lshlrev_b32 {v(o)}, 4, v1")
        a(f"v_and_b32 {v(o+1)}, 1, v1")
        a(f"v_lshlrev_b32 {v(o+1)}, 3, {v(o+1)}")
        a(f"v_and_b32 {v(tm)}, 62, v1")
        a(f"v_lshl_add_u32 {v(o+1)}, {v(tm)}, 4, {v(o+1)}")
        a(f"v_lshlrev_b32 {v(o+2)}, 1, {v(o+1)}")
        a(f"v_mov_b32 {v(o+3)}, 0")
        def loads(R, srow):
            a(f"buffer_load_dwordx2 {v(R,2)}, {v(o+1)}, s[56:59], {srow} offen")
            a(f"buffer_load_dwordx2 {v(R+2,2)}, {v(o+1)}, s[56:59], {srow} offen offset:16")
            for p in range(4):
                if p: a(f"s_add_u32 s71, {srow}, {p*2048*1024}")
                a(f"buffer_load_dwordx4 {v(R+4+4*p,4)}, {v(o)}, s[64:67], {'s71' if p else srow} offen")
        def compute(R, srow, W):
            X, S, U = W, W+8, W+16
            unpack8(a, R+4, S)
            for p in range(1, 4):
                unpack8(a, R+4+4*p, U)
                for i in range(8): a(f"v_add_f32 {v(S+i)}, {v(S+i)}, {v(U+i)}")
            unpack8(a, R, X)
            for i in range(8): a(f"v_fmac_f32 {v(X+i)}, {v(S+i)}, {v(MV+i)}")
            a(f"s_lshl_b32 s71, {srow}, 1")
            a(f"buffer_store_dwordx4 {v(X,4)}, {v(o+2)}, s[72:75], s71 offen")
            a(f"buffer_store_dwordx4 {v(X+4,4)}, {v(o+2)}, s[72:75], s71 offen offset:32")
            sm, tt, va = tm, tm+1, tm+2
            a(f"v_add_f32 {v(sm)}, {v(X)}, {v(X+1)}")
            for i in range(2, 8): a(f"v_add_f32 {v(sm)}, {v(sm)}, {v(X+i)}")
            wave_sum(a, sm, tt)
            a(f"v_mul_f32 {v(sm)}, 0x3b000000, {v(sm)}")
            for i in range(8): a(f"v_sub_f32 {v(S+i)}, {v(X+i)}, {v(sm)}")
            a(f"v_mul_f32 {v(va)}, {v(S)}, {v(S)}")
            for i in range(1, 8): a(f"v_fmac_f32 {v(va)}, {v(S+i)}, {v(S+i)}")
            wave_sum(a, va, tt)
            a(f"v_mov_b32 {v(tt)}, 0x3727c5ac")
            a(f"v_fmac_f32 {v(tt)}, 0x3b000000, {v(va)}")
            a(f"v_rsq_f32 {v(tt)}, {v(tt)}")
            a("s_nop 0")
            for i in range(8): a(f"v_mul_f32 {v(S+i)}, {v(S+i)}, {v(tt)}")
            for i in range(8): a(f"v_fma_f32 {v(S+i)}, {v(S+i)}, {v(MV+16+i)}, {v(MV+8+i)}")
            for i in range(4): a(f"v_cvt_pk_bf16_f32 {v(U+i)}, {v(S+2*i)}, {v(S+2*i+1)}")
            a(f"buffer_store_dwordx2 {v(U,2)}, {v(o+1)}, s[4:7], {srow} offen sc0 sc1")
            a(f"buffer_store_dwordx2 {v(U+2,2)}, {v(o+1)}, s[4:7], {srow} offen offset:16 sc0 sc1")
        a("s_lshl_b32 s68, s38, 3")
        a("s_add_u32 s68, s68, s28")
        a("s_lshl_b32 s68, s68, 10")
        a("s_add_u32 s68, s68, s24")
        a("s_lshl_b32 s69, s38, 1")
        a("s_add_u32 s69, s69, s28")
        a("s_add_u32 s69, s69, 112")
        a("s_lshl_b32 s69, s69, 10")
        a("s_add_u32 s69, s69, s24")
        a("s_lshr_b32 s70, s38, 3")
        a("s_lshr_b32 s71, s28, 1")
        a("s_or_b32 s70, s70, s71")
        loads(A, "s68")
        for j, col in enumerate((1024, 1536, 2048)):
            a(f"s_movk_i32 s71, {col*4}")
            a(f"buffer_load_dwordx4 {v(MV+8*j,4)}, {v(o+2)}, s[60:63], s71 offen")
            a(f"buffer_load_dwordx4 {v(MV+8*j+4,4)}, {v(o+2)}, s[60:63], s71 offen offset:32")
        nb1 = a.newlabel("nb"); nb2 = a.newlabel("nb")
        a("s_cmp_lg_u32 s70, 0")
        a(f"s_cbranch_scc1 {nb1}")
        loads(A+20, "s69")
        a.label(nb1)
        a("s_waitcnt vmcnt(0)")
        gstamp(a, "k_gu_kernel", 20)
        compute(A, "s68", A+40)
        a("s_cmp_lg_u32 s70, 0")
        a(f"s_cbranch_scc1 {nb2}")
        a("s_nop 4")
        compute(A+20, "s69", A+40)
        a.label(nb2)
        gstamp(a, "k_gu_kernel", 21)
        a("s_waitcnt vmcnt(0)")
        gstamp(a, "k_gu_kernel", 22)
        a("s_barrier")
        gstamp(a, "k_gu_kernel", 23)
        nw = a.newlabel("nw"); lp = a.newlabel("lp"); ok = a.newlabel("ok"); go = a.newlabel("go"); fl = a.newlabel("fl")
        a("s_cmp_lg_u32 s28, 0")
        a(f"s_cbranch_scc1 {nw}")
        a("s_lshl_b32 s70, s39, 2")
        a(f"v_mov_b32 {v(tm)}, 1")
        a("s_mov_b64 exec, 1")
        a(f"buffer_atomic_add {v(tm)}, {v(o+3)}, s[92:95], s70 offen sc0 sc1")
        a("s_mov_b64 exec, -1")
        a("s_movk_i32 s69, 0x2000")
        a("s_waitcnt vmcnt(0)")
        a(f"v_readfirstlane_b32 s71, {v(tm)}")
        a("s_nop 3")
        a("s_add_u32 s71, s71, 1")
        gstamp(a, "k_gu_kernel", 24)
        a.label(lp)
        a(f"s_cmp_ge_u32 s71, {NEED2}")
        a(f"s_cbranch_scc1 {ok}")
        a(f"buffer_load_dword {v(tm)}, {v(o+3)}, s[92:95], s70 offen sc0 sc1")
        a("s_waitcnt vmcnt(0)")
        a(f"v_readfirstlane_b32 s71, {v(tm)}")
        a("s_sub_u32 s69, s69, 1")
        a("s_cmp_lg_u32 s69, 0")
        a(f"s_cbranch_scc1 {lp}")
        a.label(ok)
        a(f"v_mov_b32 {v(tm)}, s69")
        a(f"v_mov_b32 {v(tm+1)}, {hex(147456)}")
        a(f"ds_write_b32 {v(tm+1)}, {v(tm)}")
        a("s_waitcnt lgkmcnt(0)")
        a.label(nw)
        a("s_barrier")
        a(f"v_mov_b32 {v(tm+1)}, {hex(147456)}")
        a(f"ds_read_b32 {v(tm)}, {v(tm+1)}")
        a("s_waitcnt lgkmcnt(0)")
        a(f"v_readfirstlane_b32 s69, {v(tm)}")
        a("s_nop 3")
        a("s_cmp_lg_u32 s69, 0")
        a(f"s_cbranch_scc1 {go}")
        a("s_lshl_b32 s68, s28, 14")
        a("s_add_u32 s68, s68, s24")
        a("s_mov_b32 s69, 16")
        a.label(fl)
        loads(A, "s68")
        a("s_waitcnt vmcnt(0)")
        compute(A, "s68", A+40)
        a("s_waitcnt vmcnt(0)")
        a("s_add_u32 s68, s68, 1024")
        a("s_sub_u32 s69, s69, 1")
        a("s_cmp_lg_u32 s69, 0")
        a(f"s_cbranch_scc1 {fl}")
        a("s_barrier")
        a.label(go)
    def epi(a, c):
        acc, TM, TN, T = c['acc'], c['TM'], c['TN'], c['T']
        vo = c['alloc'](); tmp = c['fr'][0]
        a(f"v_lshlrev_b32 {v(vo)}, 5, {v(T)}")
        a(f"v_lshl_add_u32 {v(vo)}, {v(T+1)}, 4, {v(vo)}")
        a(f"s_mul_i32 s34, s39, {128*3584}")
        a(f"s_mul_i32 s54, s30, {TM*32*3584}")
        a("s_add_u32 s34, s34, s54")
        a("s_lshl_b32 s54, s38, 13")
        a("s_add_u32 s34, s34, s54")
        a("s_lshl_b32 s54, s29, 11")
        a("s_add_u32 s34, s34, s54")
        for mb in range(TM):
            g = acc + mb*16
            u = acc + (TM+mb)*16
            for i in range(16):
                a(f"v_max_f32 {v(g+i)}, 0, {v(g+i)}")
                a(f"v_mul_f32 {v(g+i)}, {v(g+i)}, {v(u+i)}")
            a(f"s_add_u32 s54, s34, {mb*32*3584}")
            store_bf16_perm(a, g, tmp + 8*mb, vo, 16, "s54", 0, gs=1024)
    P = dict(NW=8, WM=2, WN=4, TM=2, TN=2, NST=3, KT=8, lda=1024, ldb=3584, nsub=2, perm=False, nwg=224,
             setup=setup, epilogue=epi)
    return gemm_A(a, "k_gu_kernel", P)

def gen_down(a):
    name = "k_down_kernel"
    NST, KT = 2, 7
    lda, ldb = 3584, 1024
    kernel_begin(a, name)
    end = a.newlabel("end")
    a("s_cmp_ge_u32 s2, 256")
    a(f"s_cbranch_scc1 {end}")
    load_ptr(a, 40, 'wd'); load_ptr(a, 42, 'out'); load_ptr(a, 46, 'ws')
    a("s_and_b32 s35, s2, 7")
    a("s_lshr_b32 s36, s2, 3")
    a("s_lshl_b32 s39, s35, 2")
    a("s_lshr_b32 s37, s36, 3")
    a("s_add_u32 s39, s39, s37")
    a("s_and_b32 s38, s36, 7")
    a("v_and_b32 v1, 63, v0")
    a("v_lshrrev_b32 v2, 6, v0")
    a("s_nop 0")
    a("v_readfirstlane_b32 s28, v2")
    T = 4
    vXd, vWd = 16, 17
    a("s_mov_b32 s29, 0")
    xdma_voff(a, 1, "s29", vXd, 10, lda, True)
    a(f"v_xor_b32 v18, 0x800, {v(vXd)}")
    wdma_voff(a, 1, "s29", vWd, 10, ldb, 64)
    a(f"s_mul_i32 s24, s39, {64*lda}")
    a("s_lshl_b32 s54, s28, 12")
    a("s_add_u32 s24, s24, s54")
    a("s_lshl_b32 s25, s28, 16")
    a("s_lshl_b32 s54, s38, 7")
    a("s_add_u32 s25, s25, s54")
    a("s_lshl_b32 s33, s28, 15")
    a("s_waitcnt lgkmcnt(0)")
    make_srd(a, 4, 46, WS_ACT, 2048*3584)
    make_srd(a, 8, 40, 0, 1792*1024)
    xa = 20
    wa = [24, 25]
    def late():
        make_srd(a, 16, 42, 0, 2048*1024)
        make_srd(a, 12, 46, WS_X1, 2048*2048)
        make_srd(a, 20, 46, WS_MOD, 12288)
        lane_decomp(a, 1, T)
        xfrag_addrs(a, T, xa, 128, 0, "s33")
        for nb in range(2):
            wfrag_addr(a, T, wa[nb], 10, 128, True, nb, 8192)
            a(f"v_add_u32 {v(wa[nb])}, s33, {v(wa[nb])}")
    fr = [28, 44]
    acc = 60
    def dma(t):
        st = t % NST
        out = []
        for j in range(8):
            out.append([f"s_add_u32 m0, s33, {st*16384 + j*1024}",
                        f"s_add_u32 s34, s24, {t*16384 + (j>>2)*32*lda + (j&3)*256}",
                        f"buffer_load_dwordx4 {v(vXd if j%2==0 else 18)}, s[4:7], s34 offen lds"])
        for j in range(8):
            out.append([f"s_add_u32 m0, s33, {st*16384 + 8192 + j*1024}",
                        f"s_add_u32 s34, s25, {t*256*ldb + j*8*ldb}",
                        f"buffer_load_dwordx4 {v(vWd)}, s[8:11], s34 offen lds"])
        return out
    def reads(t, ks, f):
        st = t % NST
        for mb in range(2):
            a(f"ds_read_b128 {v(f+4*mb,4)}, {v(xa+ks)} offset:{st*16384+mb*4096}")
        for nb in range(2):
            for half in range(2):
                a(f"ds_read_b64_tr_b16 {v(f+8+4*nb+2*half,2)}, {v(wa[nb])} offset:{st*16384+16*ks*128+half*8*128}")
    for t in range(2):
        for g in dma(t):
            for i in g: a(i)
    late()
    for t in range(KT):
        a(f"s_waitcnt vmcnt({16 if t < KT-1 else 0})")
        reads(t, 0, fr[0])
        for ks in range(4):
            a("s_waitcnt lgkmcnt(0)")
            if ks < 3: reads(t, ks+1, fr[(ks+1)&1])
            f = fr[ks&1]
            for nb in range(2):
                for mb in range(2):
                    c = acc + (nb*2+mb)*16
                    src = "0" if (t == 0 and ks == 0) else v(c,16)
                    a(f"{MF} {v(c,16)}, {v(f+8+4*nb,4)}, {v(f+4*mb,4)}, {src}")
        if t+2 < KT:
            for g in dma(t+2):
                for i in g: a(i)
    a("s_nop 15")
    a("s_barrier")
    a("v_lshlrev_b32 v26, 4, v1")
    a("s_lshl_b32 s54, s28, 14")
    a("v_add_u32 v27, s54, v26")
    for tl in range(4):
        for q in range(4):
            a(f"ds_write_b128 v27, {v(acc+tl*16+4*q,4)} offset:{tl*4096+q*1024}")
    a("s_waitcnt lgkmcnt(0)")
    a("s_barrier")
    a("s_lshl_b32 s54, s28, 12")
    a("v_add_u32 v27, s54, v26")
    a("s_lshr_b32 s29, s28, 1")
    a("s_and_b32 s30, s28, 1")
    a("s_lshl_b32 s54, s39, 6")
    a("s_lshl_b32 s55, s30, 5")
    a("s_add_u32 s54, s54, s55")
    a("s_lshl_b32 s55, s38, 6")
    a("s_lshl_b32 s56, s29, 5")
    a("s_add_u32 s55, s55, s56")
    a("s_lshl_b32 s56, s54, 11")
    a("s_lshl_b32 s57, s55, 2")
    a("s_add_u32 s56, s56, s57")
    a("s_add_u32 s57, s57, 10240")
    a("s_lshr_b32 s58, s56, 1")
    a(f"v_lshlrev_b32 v10, 11, {v(T)}")
    a(f"v_lshl_add_u32 v10, {v(T+1)}, 4, v10")
    a(f"v_lshlrev_b32 v11, 4, {v(T+1)}")
    a("v_lshrrev_b32 v12, 1, v10")
    for q in range(4):
        a(f"buffer_load_dwordx4 {v(28+4*q,4)}, v10, s[12:15], s56 offen offset:{q*32}")
        a(f"buffer_load_dwordx4 {v(44+4*q,4)}, v11, s[20:23], s57 offen offset:{q*32}")
    for w in range(4):
        for q in range(4):
            a(f"ds_read_b128 {v(acc+w*16+4*q,4)}, v27 offset:{w*16384+q*1024}")
        if w == 2: a("s_waitcnt lgkmcnt(0)")
    a("s_waitcnt lgkmcnt(0)")
    for w in range(1, 4):
        for i in range(16):
            a(f"v_add_f32 {v(acc+i)}, {v(acc+i)}, {v(acc+16*w+i)}")
    a("s_waitcnt vmcnt(0)")
    for i in range(16):
        a(f"v_fmac_f32 {v(28+i)}, {v(acc+i)}, {v(44+i)}")
    for q in range(4):
        a(f"v_cvt_pk_bf16_f32 {v(acc+16+2*q)}, {v(28+4*q)}, {v(28+4*q+1)}")
        a(f"v_cvt_pk_bf16_f32 {v(acc+16+2*q+1)}, {v(28+4*q+2)}, {v(28+4*q+3)}")
        a(f"buffer_store_dwordx2 {v(acc+16+2*q,2)}, v12, s[16:19], s58 offen offset:{q*16}")
    a.label(end)
    a("s_endpgm")
    return name, acc+64, (256, 256, 131072)
```

```python
class Asm:
    def __init__(self):
        self.lines = []
        self.uid = 0
    def __call__(self, s):
        self.lines.append("    " + s)
    def label(self, s):
        self.lines.append(s + ":")
    def raw(self, s):
        self.lines.append(s)
    def newlabel(self, p="L"):
        self.uid += 1
        return f".{p}_{self.uid}"
    def text(self):
        return "\n".join(self.lines) + "\n"

KA = dict(x=0, ckv=8, wq=16, wuk=24, wuv=32, wo=40, bx=48, wg=56, wu=64, wd=72, c=80, wmod=88, out=96, dbg=104, ws=112)
WS_MOD = 0
WS_H = 0x10000
WS_K = 0x400000
WS_V = 0x1400000
WS_CTX = 0x2400000
WS_PART = 0x3400000
WS_X1 = 0x4400000
WS_H2 = 0x4800000
WS_ACT = 0x4C00000

def v(i, n=1):
    return f"v{i}" if n == 1 else f"v[{i}:{i+n-1}]"
def s(i, n=1):
    return f"s{i}" if n == 1 else f"s[{i}:{i+n-1}]"

def kernel_begin(a, name):
    a.raw(f".globl {name}")
    a.raw(".p2align 8")
    a.raw(f".type {name},@function")
    a.label(name)

def kernel_desc(name, nvgpr, nsgpr=102):
    acc = (nvgpr + 3) // 4 * 4
    return f""".p2align 6
.amdhsa_kernel {name}
  .amdhsa_next_free_vgpr {nvgpr}
  .amdhsa_next_free_sgpr {nsgpr}
  .amdhsa_accum_offset {acc}
  .amdhsa_group_segment_fixed_size 0
  .amdhsa_kernarg_size 120
  .amdhsa_user_sgpr_count 2
  .amdhsa_user_sgpr_kernarg_segment_ptr 1
  .amdhsa_system_sgpr_workgroup_id_x 1
.end_amdhsa_kernel
"""

def load_ptr(a, sreg, key):
    a(f"s_load_dwordx2 {s(sreg,2)}, s[0:1], {KA[key]}")

def make_srd(a, d, ptr, off, nbytes):
    if off:
        a(f"s_add_u32 {s(d)}, {s(ptr)}, {hex(off)}")
        a(f"s_addc_u32 {s(d+1)}, {s(ptr+1)}, 0")
        a(f"s_and_b32 {s(d+1)}, {s(d+1)}, 0xffff")
    else:
        a(f"s_mov_b32 {s(d)}, {s(ptr)}")
        a(f"s_and_b32 {s(d+1)}, {s(ptr+1)}, 0xffff")
    a(f"s_mov_b32 {s(d+2)}, {hex(nbytes)}")
    a(f"s_mov_b32 {s(d+3)}, 0x20000")

def touch(a, srd, regs, g, tmp, vx):
    st = 0
    assert all(nb % 8192 == 0 for _, nb in regs)
    a(f"s_min_u32 {s(g)}, {s(g)}, {sum(nb//8192 for _, nb in regs) - 1}")
    for i, (p, nb) in enumerate(regs):
        if i == 0:
            a(f"s_mov_b32 {s(srd)}, {s(p)}")
            a(f"s_mov_b32 {s(srd+1)}, {s(p+1)}")
            a(f"s_mov_b32 {s(srd+2)}, {hex(nb)}")
            a(f"s_mov_b32 {s(tmp)}, 0")
        else:
            a(f"s_cmp_ge_u32 {s(g)}, {st}")
            a(f"s_cselect_b32 {s(srd)}, {s(p)}, {s(srd)}")
            a(f"s_cselect_b32 {s(srd+1)}, {s(p+1)}, {s(srd+1)}")
            a(f"s_cselect_b32 {s(srd+2)}, {hex(nb)}, {s(srd+2)}")
            a(f"s_cselect_b32 {s(tmp)}, {st}, {s(tmp)}")
        st += (nb + 8191)//8192
    a(f"s_and_b32 {s(srd+1)}, {s(srd+1)}, 0xffff")
    a(f"s_mov_b32 {s(srd+3)}, 0x20000")
    a(f"s_sub_u32 {s(tmp)}, {s(g)}, {s(tmp)}")
    a(f"s_lshl_b32 {s(tmp)}, {s(tmp)}, 13")
    a(f"v_lshlrev_b32 {v(vx)}, 7, v1")
    a(f"buffer_load_dword {v(vx)}, {v(vx)}, {s(srd,4)}, {s(tmp)} offen")

def wave_sum(a, x, t):
    a("s_nop 1")
    a(f"v_add_f32_dpp {v(x)}, {v(x)}, {v(x)} quad_perm:[1,0,3,2] row_mask:0xf bank_mask:0xf")
    a("s_nop 1")
    a(f"v_add_f32_dpp {v(x)}, {v(x)}, {v(x)} quad_perm:[2,3,0,1] row_mask:0xf bank_mask:0xf")
    a("s_nop 1")
    a(f"v_add_f32_dpp {v(x)}, {v(x)}, {v(x)} row_half_mirror row_mask:0xf bank_mask:0xf")
    a("s_nop 1")
    a(f"v_add_f32_dpp {v(x)}, {v(x)}, {v(x)} row_mirror row_mask:0xf bank_mask:0xf")
    a(f"v_mov_b32 {v(t)}, {v(x)}")
    a("s_nop 1")
    a(f"v_permlane16_swap_b32 {v(x)}, {v(t)}")
    a("s_nop 1")
    a(f"v_add_f32 {v(x)}, {v(x)}, {v(t)}")
    a(f"v_mov_b32 {v(t)}, {v(x)}")
    a("s_nop 1")
    a(f"v_permlane32_swap_b32 {v(x)}, {v(t)}")
    a("s_nop 1")
    a(f"v_add_f32 {v(x)}, {v(x)}, {v(t)}")

def round_bf16(a, d, x):
    a(f"v_cvt_pk_bf16_f32 {v(d)}, {v(x)}, {v(x)}")
    a(f"v_lshlrev_b32 {v(d)}, 16, {v(d)}")

def ln_loads(a, t0, sMOD, voff8, shift_col, scale_col):
    G = t0 + 4
    S = t0 + 12
    a(f"s_mov_b32 s90, {scale_col*4}")
    a(f"s_mov_b32 s91, {shift_col*4}")
    a(f"buffer_load_dwordx4 {v(G,4)}, {v(voff8)}, {s(sMOD,4)}, s90 offen")
    a(f"buffer_load_dwordx4 {v(G+4,4)}, {v(voff8)}, {s(sMOD,4)}, s90 offen offset:16")
    a(f"buffer_load_dwordx4 {v(S,4)}, {v(voff8)}, {s(sMOD,4)}, s91 offen")
    a(f"buffer_load_dwordx4 {v(S+4,4)}, {v(voff8)}, {s(sMOD,4)}, s91 offen offset:16")

def ln_row(a, X, t0, sMOD, voff8, shift_col, scale_col, outregs, loads=True):
    G = t0 + 4
    S = t0 + 12
    if loads: ln_loads(a, t0, sMOD, voff8, shift_col, scale_col)
    sm, tt, va = t0, t0 + 1, t0 + 2
    a(f"v_add_f32 {v(sm)}, {v(X)}, {v(X+1)}")
    for i in range(2, 8):
        a(f"v_add_f32 {v(sm)}, {v(sm)}, {v(X+i)}")
    wave_sum(a, sm, tt)
    a(f"v_mul_f32 {v(sm)}, 0x3b000000, {v(sm)}")
    for i in range(8):
        a(f"v_sub_f32 {v(X+i)}, {v(X+i)}, {v(sm)}")
    a(f"v_mul_f32 {v(va)}, {v(X)}, {v(X)}")
    for i in range(1, 8):
        a(f"v_fmac_f32 {v(va)}, {v(X+i)}, {v(X+i)}")
    wave_sum(a, va, tt)
    a(f"v_mov_b32 {v(tt)}, 0x3727c5ac")
    a(f"v_fmac_f32 {v(tt)}, 0x3b000000, {v(va)}")
    a(f"v_rsq_f32 {v(tt)}, {v(tt)}")
    a("s_waitcnt vmcnt(0)" if loads else "s_nop 0")
    for i in range(8):
        a(f"v_mul_f32 {v(X+i)}, {v(X+i)}, {v(tt)}")
    for i in range(8):
        a(f"v_fma_f32 {v(X+i)}, {v(X+i)}, {v(G+i)}, {v(S+i)}")
    for i in range(4):
        a(f"v_cvt_pk_bf16_f32 {v(outregs+i)}, {v(X+2*i)}, {v(X+2*i+1)}")

def unpack8(a, src, dst):
    for i in range(4):
        a(f"v_lshlrev_b32 {v(dst+2*i)}, 16, {v(src+i)}")
        a(f"v_and_b32 {v(dst+2*i+1)}, 0xffff0000, {v(src+i)}")
```

```python
from common import *
from gemm import *
import os

def store_bf16_perm(a, c, tmp, voff, srd, soff, imm, cvt="v_cvt_pk_bf16_f32", gs=32, pol=""):
    for g in range(2):
        t = tmp + 4*g
        for i in range(4):
            a(f"{cvt} {v(t+i)}, {v(c+8*g+2*i)}, {v(c+8*g+2*i+1)}")
        a(f"buffer_store_dwordx4 {v(t,4)}, {v(voff)}, {s(srd,4)}, {soff} offen offset:{imm+gs*g}{pol}")

def gen_kv(a):
    def setup(a, ph):
        if ph == 0:
            load_ptr(a, 40, 'ckv'); load_ptr(a, 42, 'wuk'); load_ptr(a, 44, 'wuv'); load_ptr(a, 46, 'ws'); load_ptr(a, 48, 'x')
            load_ptr(a, 72, 'c'); load_ptr(a, 76, 'wmod'); load_ptr(a, 92, 'dbg'); load_ptr(a, 100, 'wq')
            a("s_and_b32 s35, s2, 7")
            a("s_lshr_b32 s36, s2, 3")
            a("s_and_b32 s37, s36, 1")
            a("s_lshl_b32 s38, s35, 1")
            a("s_add_u32 s37, s37, s38")
            if os.environ.get('FLIPKV'): a("s_xor_b32 s37, s37, 2")
            a("s_bfe_u32 s38, s36, 0x10001")
            a("s_lshr_b32 s39, s36, 2")
        if ph == 1:
            make_srd(a, 4, 40, 0, 2048*1024)
            a("s_cmp_eq_u32 s38, 1")
            a("s_cselect_b32 s50, s44, s42")
            a("s_cselect_b32 s51, s45, s43")
            make_srd(a, 8, 50, 0, 512*8192)
            a("s_lshl_b32 s24, s39, 18")
            a("s_lshl_b32 s25, s37, 9")
            make_srd(a, 56, 48, 0, 2048*1024)
            make_srd(a, 72, 72, 0, 1024)
            make_srd(a, 76, 76, 0, 512*6144)
        if ph == 2:
            a(f"s_mul_i32 s52, s38, {WS_V-WS_K}")
            a("s_add_u32 s52, s46, s52")
            a("s_addc_u32 s53, s47, 0")
            make_srd(a, 16, 52, WS_K, 32*2048*256)
            make_srd(a, 60, 46, WS_MOD, 12288)
            make_srd(a, 64, 46, WS_H, 2048*1024)
            make_srd(a, 92, 92, 0, 256)
    st = {}
    NEED = int(os.environ.get('NEED', '64'))
    PF = int(os.environ.get('PF', '3'))
    PT = int(os.environ.get('PT', '5'))
    def pre(a, c):
        t = c['alloc'](40, 4); st['t'] = t
        a("s_lshl_b32 s68, s2, 3")
        a("s_add_u32 s68, s68, s28")
        a("s_lshl_b32 s68, s68, 10")
        a(f"v_lshlrev_b32 {v(t)}, 4, v1")
        a(f"v_lshlrev_b32 {v(t+1)}, 5, v1")
        a(f"buffer_load_dwordx4 {v(t+4,4)}, {v(t)}, s[56:59], s68 offen")
        a("s_min_u32 s69, s36, 23")
        a("s_mul_i32 s70, s35, 24")
        a("s_add_u32 s69, s69, s70")
        a(f"v_lshrrev_b32 {v(t+2)}, 2, v0")
        a(f"v_lshlrev_b32 {v(t+3)}, 3, {v(t+2)}")
        a(f"buffer_load_dwordx2 {v(t+16,2)}, {v(t+3)}, s[72:75], 0 offen")
        a(f"v_mul_u32_u24 {v(t+2)}, {4*6144}, {v(t+2)}")
        a(f"v_and_b32 {v(t+3)}, 3, v0")
        a(f"v_lshl_add_u32 {v(t+2)}, {v(t+3)}, 3, {v(t+2)}")
        a("s_lshl_b32 s70, s69, 5")
        for j in range(4):
            a(f"buffer_load_dwordx2 {v(t+20+2*j,2)}, {v(t+2)}, s[76:79], s70 offen")
            if j < 3: a(f"s_add_u32 s70, s70, 6144")
    def silu_bf(a, d, x, tmp):
        a(f"v_mul_f32 {v(tmp)}, 0xbfb8aa3b, {v(x)}")
        a(f"v_exp_f32 {v(tmp)}, {v(tmp)}")
        a("s_nop 0")
        a(f"v_add_f32 {v(tmp)}, 1.0, {v(tmp)}")
        a(f"v_rcp_f32 {v(tmp)}, {v(tmp)}")
        a("s_nop 0")
        a(f"v_mul_f32 {v(tmp)}, {v(tmp)}, {v(x)}")
        round_bf16(a, d, tmp)
    def mid(a, c):
        t = st['t']
        if PF & 1:
            a("s_lshr_b32 s70, s68, 10")
            touch(a, 96, [(42, 4 << 20), (44, 4 << 20), (40, 2 << 20), (100, 4 << 20)], 70, 71, t+19)
        a(f"s_waitcnt vmcnt({c['L']*c['NST'] + (PF & 1)})")
        for i in range(2):
            a(f"v_lshlrev_b32 {v(t+28+2*i)}, 16, {v(t+16+i)}")
            a(f"v_and_b32 {v(t+29+2*i)}, 0xffff0000, {v(t+16+i)}")
        for j in range(4): silu_bf(a, t+28+j, t+28+j, t+36)
        for j in range(4):
            for i in range(2):
                a(f"v_lshlrev_b32 {v(t+36)}, 16, {v(t+20+2*j+i)}")
                a(f"v_and_b32 {v(t+37)}, 0xffff0000, {v(t+20+2*j+i)}")
                op = "v_mul_f32" if j == 0 else "v_fmac_f32"
                a(f"{op} {v(t+32+2*i)}, {v(t+36)}, {v(t+28+j)}")
                a(f"{op} {v(t+33+2*i)}, {v(t+37)}, {v(t+28+j)}")
        a("s_nop 1")
        for ror in (8, 4):
            for i in range(4):
                a(f"v_add_f32_dpp {v(t+32+i)}, {v(t+32+i)}, {v(t+32+i)} row_ror:{ror} row_mask:0xf bank_mask:0xf")
        for sw in ("v_permlane16_swap_b32", "v_permlane32_swap_b32"):
            for i in range(4): a(f"v_mov_b32 {v(t+36+i)}, {v(t+32+i)}")
            a("s_nop 1")
            for i in range(4): a(f"{sw} {v(t+32+i)}, {v(t+36+i)}")
            a("s_nop 1")
            for i in range(4): a(f"v_add_f32 {v(t+32+i)}, {v(t+32+i)}, {v(t+36+i)}")
        a("s_lshl_b32 s70, s28, 6")
        a("s_add_u32 s70, s70, 147456")
        a(f"v_lshlrev_b32 {v(t+3)}, 4, {v(t+3)}")
        a(f"v_add_u32 {v(t+3)}, s70, {v(t+3)}")
        a(f"ds_write_b128 {v(t+3)}, {v(t+32,4)}")
        X = t+8; sm, tt, va = t+16, t+17, t+18
        unpack8(a, t+4, X)
        a(f"v_add_f32 {v(sm)}, {v(X)}, {v(X+1)}")
        for i in range(2, 8): a(f"v_add_f32 {v(sm)}, {v(sm)}, {v(X+i)}")
        wave_sum(a, sm, tt)
        a(f"v_mul_f32 {v(sm)}, 0x3b000000, {v(sm)}")
        for i in range(8): a(f"v_sub_f32 {v(X+i)}, {v(X+i)}, {v(sm)}")
        a(f"v_mul_f32 {v(va)}, {v(X)}, {v(X)}")
        for i in range(1, 8): a(f"v_fmac_f32 {v(va)}, {v(X+i)}, {v(X+i)}")
        wave_sum(a, va, tt)
        a(f"v_mov_b32 {v(tt)}, 0x3727c5ac")
        a(f"v_fmac_f32 {v(tt)}, 0x3b000000, {v(va)}")
        a(f"v_rsq_f32 {v(tt)}, {v(tt)}")
        a("s_nop 0")
        for i in range(8): a(f"v_mul_f32 {v(X+i)}, {v(X+i)}, {v(tt)}")
        a("s_waitcnt lgkmcnt(0)")
        return PF & 1
    def pf_a(a):
        a("s_load_dwordx8 s[40:47], s[0:1], 40")
        a("s_load_dwordx2 s[48:49], s[0:1], 72")
    def pf_b(a):
        a("s_lshr_b32 s70, s68, 10")
        touch(a, 96, [(40, 4 << 20), (44, 512*1792*2), (46, 512*1792*2), (48, 512*1792*2)], 70, 71, st['t']+19)
    def h0(a):
        t = st['t']; sk = a.newlabel("sk")
        a("s_cmp_lg_u32 s28, 0")
        a(f"s_cbranch_scc1 {sk}")
        a("s_cmp_ge_u32 s36, 24")
        a(f"s_cbranch_scc1 {sk}")
        a(f"v_and_b32 {v(t+2)}, 15, v1")
        a(f"v_lshlrev_b32 {v(t+2)}, 2, {v(t+2)}")
        a(f"v_add_u32 {v(t+3)}, 0x24000, {v(t+2)}")
        for w in range(8): a(f"ds_read_b32 {v(t+20+w)}, {v(t+3)} offset:{w*64}")
        a("s_waitcnt lgkmcnt(0)")
        for w in range(1, 8): a(f"v_add_f32 {v(t+20)}, {v(t+20)}, {v(t+20+w)}")
        round_bf16(a, t+20, t+20)
        a("s_lshr_b32 s70, s69, 5")
        a("s_cmp_eq_u32 s70, 1")
        a("s_cselect_b32 s71, 1.0, 0")
        a("s_cmp_eq_u32 s70, 4")
        a("s_cselect_b32 s71, 1.0, s71")
        a(f"v_add_f32 {v(t+20)}, s71, {v(t+20)}")
        round_bf16(a, t+20, t+20)
        a("s_lshl_b32 s70, s69, 6")
        a(f"buffer_store_dword {v(t+20)}, {v(t+2)}, s[60:63], s70 offen sc0 sc1")
        a.label(sk)
    def h1(a):
        t = st['t']; sk = a.newlabel("sk")
        a("s_cmp_lg_u32 s28, 0")
        a(f"s_cbranch_scc1 {sk}")
        a("s_cmp_ge_u32 s36, 24")
        a(f"s_cbranch_scc1 {sk}")
        a("s_cmp_ge_u32 s69, 64")
        a(f"s_cbranch_scc1 {sk}")
        a(f"v_mov_b32 {v(t+2)}, 0")
        a(f"v_mov_b32 {v(t+3)}, 1")
        a("s_mov_b64 exec, 1")
        a(f"buffer_atomic_add {v(t+3)}, {v(t+2)}, s[92:95], 0 offen sc1")
        a("s_mov_b64 exec, -1")
        a.label(sk)
    def h5(a):
        t = st['t']
        a(f"v_mov_b32 {v(t+2)}, 0")
        a(f"buffer_load_dword {v(t+3)}, {v(t+2)}, s[92:95], 0 offen sc0 sc1")
    def h6(a):
        t = st['t']; ok = a.newlabel("ok"); lp = a.newlabel("lp"); dn = a.newlabel("dn"); fl = a.newlabel("fl")
        G, S = t+20, t+28
        a("s_movk_i32 s71, 0x2000")
        a("s_waitcnt vmcnt(0)")
        a.label(lp)
        a(f"v_readfirstlane_b32 s70, {v(t+3)}")
        a("s_nop 3")
        a(f"s_cmp_ge_u32 s70, {NEED}")
        a(f"s_cbranch_scc1 {ok}")
        a("s_sleep 4")
        a(f"buffer_load_dword {v(t+3)}, {v(t+2)}, s[92:95], 0 offen sc0 sc1")
        a("s_waitcnt vmcnt(0)")
        a("s_sub_u32 s71, s71, 1")
        a("s_cmp_lg_u32 s71, 0")
        a(f"s_cbranch_scc1 {lp}")
        for i in range(16): a(f"v_mov_b32 {v(G+i)}, 0")
        a("s_mov_b32 s70, 0")
        a("s_mov_b32 s71, 0")
        a.label(fl)
        a(f"buffer_load_ushort {v(t+16)}, {v(t+2)}, s[72:75], s70 offen")
        for dst, off in ((S, 0), (G, 1024)):
            a(f"buffer_load_dwordx4 {v(t+36,4)}, {v(t)}, s[76:79], s71 offen offset:{off}")
            a("s_waitcnt vmcnt(0)")
            if off == 0:
                a(f"v_lshlrev_b32 {v(t+16)}, 16, {v(t+16)}")
                silu_bf(a, t+16, t+16, t+17)
            for i in range(4):
                a(f"v_lshlrev_b32 {v(t+17)}, 16, {v(t+36+i)}")
                a(f"v_and_b32 {v(t+18)}, 0xffff0000, {v(t+36+i)}")
                a(f"v_fmac_f32 {v(dst+2*i)}, {v(t+17)}, {v(t+16)}")
                a(f"v_fmac_f32 {v(dst+2*i+1)}, {v(t+18)}, {v(t+16)}")
        a("s_add_u32 s70, s70, 2")
        a("s_add_u32 s71, s71, 6144")
        a("s_cmp_lt_u32 s70, 1024")
        a(f"s_cbranch_scc1 {fl}")
        for i in range(16): round_bf16(a, G+i, G+i)
        for i in range(8):
            a(f"v_add_f32 {v(G+i)}, 1.0, {v(G+i)}")
            round_bf16(a, G+i, G+i)
        a(f"s_branch {dn}")
        a.label(ok)
        a(f"buffer_load_dwordx4 {v(G,4)}, {v(t+1)}, s[60:63], 0 offen offset:2048 sc0 sc1")
        a(f"buffer_load_dwordx4 {v(G+4,4)}, {v(t+1)}, s[60:63], 0 offen offset:2064 sc0 sc1")
        a(f"buffer_load_dwordx4 {v(S,4)}, {v(t+1)}, s[60:63], 0 offen sc0 sc1")
        a(f"buffer_load_dwordx4 {v(S+4,4)}, {v(t+1)}, s[60:63], 0 offen offset:16 sc0 sc1")
        a.label(dn)
    def h7(a):
        t = st['t']; X = t+8; G, S = t+20, t+28
        for i in range(8): a(f"v_fma_f32 {v(X+i)}, {v(X+i)}, {v(G+i)}, {v(S+i)}")
        for i in range(4): a(f"v_cvt_pk_bf16_f32 {v(t+4+i)}, {v(X+2*i)}, {v(X+2*i+1)}")
        a(f"buffer_store_dwordx4 {v(t+4,4)}, {v(t)}, s[64:67], s68 offen")
    def init(a, c):
        T = c['T']
        st['acc'] = c['acc']
        vo = c['alloc'](); st['vo'] = vo; st['tmp'] = c['alloc'](16, 4)
        a(f"v_lshlrev_b32 {v(vo)}, 5, {v(T)}")
        a(f"v_lshl_add_u32 {v(vo)}, {v(T+1)}, 4, {v(vo)}")
        a("s_lshl_b32 s84, s39, 16")
        a("s_lshl_b32 s54, s30, 14")
        a("s_add_u32 s84, s84, s54")
        a("s_lshl_b32 s54, s37, 20")
        a("s_add_u32 s84, s84, s54")
        a("s_lshl_b32 s54, s29, 12")
        a("s_add_u32 s84, s84, s54")
    def part(a, sub, mb, nb, pol=""):
        a(f"s_add_u32 s54, s84, {mb*32*256 + sub*2048*256}")
        store_bf16_perm(a, st['acc'] + sub*64 + (nb*2+mb)*16, st['tmp'] + 8*(nb&1), st['vo'], 16, "s54", nb*2048, gs=1024, pol=pol)
    def epi(a, c):
        for mb in range(2):
            for nb in range(2): part(a, 1, mb, nb)
        a("s_waitcnt vmcnt(8)")
        h7(a)
    POL = os.environ.get('KVPOL', '')
    def seq(*fs):
        def f(a):
            for x in fs: x(a)
        return f
    pp = lambda mb, nb: (lambda a: part(a, 0, mb, nb, POL))
    P = dict(NW=8, WM=4, WN=2, TM=2, TN=2, NST=3, KT=8, nseq=2, lda=1024, ldb=8192, nsub=1, perm=False, nwg=256,
             setup=setup, epilogue=epi, mid=mid, pre=pre, xlds=512, init=init,
             xw={13: 1, 14: 1},
             hooks={0: h0, 3: h1, 9: pp(0,0), 10: pp(0,1), 11: pp(1,0), 12: pp(1,1), (13,1): h5, (15,1): h6})
    if PF & 1: P['xw'][0] = 1
    if PF & 2:
        P['hooks'][(PT-1, 1)] = pf_a; P['hooks'][PT] = pf_b; P['xw'][PT] = 1
    return gemm_A(a, "k_kv_kernel", P)

def gen_oproj4(a):
    def setup(a, ph):
        if ph == 0:
            load_ptr(a, 40, 'wo'); load_ptr(a, 46, 'ws')
            a("s_and_b32 s35, s2, 7")
            a("s_lshr_b32 s36, s2, 3")
            a("s_lshr_b32 s37, s35, 1")
            if os.environ.get('FLIP'): a("s_xor_b32 s37, s37, 1")
            a("s_and_b32 s38, s35, 1")
            a("s_lshl_b32 s38, s38, 3")
            a("s_lshr_b32 s39, s36, 2")
            a("s_add_u32 s39, s39, s38")
            a("s_and_b32 s38, s36, 3")
        if ph == 1:
            make_srd(a, 4, 46, WS_CTX, 2048*8192)
            make_srd(a, 8, 40, 0, 4096*1024)
            a("s_lshl_b32 s24, s39, 20")
            a("s_lshl_b32 s54, s37, 16")
            a("s_add_u32 s24, s24, s54")
            a("s_lshl_b32 s25, s37, 20")
            a("s_lshl_b32 s54, s38, 8")
            a("s_add_u32 s25, s25, s54")
        if ph == 2:
            make_srd(a, 16, 46, WS_PART, 4*2048*1024)
    def epi(a, c):
        acc, TM, TN, T = c['acc'], c['TM'], c['TN'], c['T']
        vo = c['alloc'](); tmp = c['fr'][0]
        PB = int(os.environ.get('PB', '1'))
        a(f"v_lshlrev_b32 {v(vo)}, {5 if PB else 10}, {v(T)}")
        a(f"v_lshl_add_u32 {v(vo)}, {v(T+1)}, 4, {v(vo)}")
        a("s_lshl_b32 s34, s37, 21")
        a("s_lshl_b32 s54, s39, 17")
        a("s_add_u32 s34, s34, s54")
        a(f"s_mul_i32 s54, s30, {TM*32*1024}")
        a("s_add_u32 s34, s34, s54")
        a(f"s_lshl_b32 s54, s38, {13 if PB else 8}")
        a("s_add_u32 s34, s34, s54")
        a(f"s_mul_i32 s54, s29, {TN*32*2*(32 if PB else 1)}")
        a("s_add_u32 s34, s34, s54")
        kk = 0
        for mb in range(TM):
            a(f"s_add_u32 s54, s34, {mb*32*1024}")
            for nb in range(TN):
                store_bf16_perm(a, acc+(nb*TM+mb)*16, tmp + 8*(kk % 4), vo, 16, "s54", nb*(2048 if PB else 64), "v_cvt_pkrtz_f16_f32", gs=(1024 if PB else 32))
                kk += 1
    P = dict(NW=4, WM=2, WN=2, TM=2, TN=2, NST=4, KT=16, lda=8192, ldb=1024, nsub=1, perm=False, nwg=256, xblk=True,
             setup=setup, epilogue=epi)
    return gemm_A(a, "k_oproj_kernel", P)

def gen_oproj(a):
    def setup(a, ph):
        if ph == 0:
            load_ptr(a, 40, 'wo'); load_ptr(a, 46, 'ws')
            a("s_and_b32 s37, s2, 7")
            a("s_lshr_b32 s36, s2, 3")
            a("s_lshr_b32 s39, s36, 2")
            a("s_and_b32 s38, s36, 3")
        if ph == 1:
            make_srd(a, 4, 46, WS_CTX, 2048*8192)
            make_srd(a, 8, 40, 0, 4096*1024)
            a("s_lshl_b32 s24, s39, 21")
            a("s_lshl_b32 s54, s37, 15")
            a("s_add_u32 s24, s24, s54")
            a("s_lshl_b32 s25, s37, 19")
            a("s_lshl_b32 s54, s38, 8")
            a("s_add_u32 s25, s25, s54")
        if ph == 2:
            make_srd(a, 16, 46, WS_PART, 8*2048*1024)
    def epi(a, c):
        acc, TM, TN, T = c['acc'], c['TM'], c['TN'], c['T']
        vo = c['alloc'](); tmp = c['fr'][0]
        a(f"v_lshlrev_b32 {v(vo)}, 5, {v(T)}")
        a(f"v_lshl_add_u32 {v(vo)}, {v(T+1)}, 4, {v(vo)}")
        a("s_lshl_b32 s34, s37, 21")
        a("s_lshl_b32 s54, s39, 18")
        a("s_add_u32 s34, s34, s54")
        a(f"s_mul_i32 s54, s30, {TM*32*1024}")
        a("s_add_u32 s34, s34, s54")
        a(f"s_lshl_b32 s54, s38, 13")
        a("s_add_u32 s34, s34, s54")
        a(f"s_mul_i32 s54, s29, {TN*32*2*32}")
        a("s_add_u32 s34, s34, s54")
        kk = 0
        for mb in range(TM):
            a(f"s_add_u32 s54, s34, {mb*32*1024}")
            for nb in range(TN):
                store_bf16_perm(a, acc+(nb*TM+mb)*16, tmp + 8*(kk % 4), vo, 16, "s54", nb*2048, "v_cvt_pkrtz_f16_f32", gs=1024)
                kk += 1
    P = dict(NW=8, WM=4, WN=2, TM=2, TN=2, NST=3, KT=8, lda=8192, ldb=1024, nsub=1, perm=False, nwg=256, xblk=True,
             setup=setup, epilogue=epi)
    return gemm_A(a, "k_oproj_kernel", P)

def gen_gu(a):
    def setup(a, ph):
        if ph == 0:
            load_ptr(a, 40, 'wg'); load_ptr(a, 42, 'wu'); load_ptr(a, 46, 'ws')
            a("s_and_b32 s35, s2, 7")
            a("s_lshr_b32 s36, s2, 3")
            a("s_mul_i32 s37, s36, 37")
            a("s_lshr_b32 s37, s37, 8")
            a("s_mul_i32 s38, s37, 7")
            a("s_sub_u32 s38, s36, s38")
            a("s_lshr_b32 s39, s35, 1")
            a("s_lshl_b32 s39, s39, 2")
            a("s_add_u32 s39, s39, s37")
            a("s_and_b32 s54, s35, 1")
            a("s_mul_i32 s54, s54, 7")
            a("s_add_u32 s38, s38, s54")
        if ph == 1:
            make_srd(a, 4, 46, WS_H2, 2048*1024)
            make_srd(a, 8, 40, 0, 512*3584)
            make_srd(a, 12, 42, 0, 512*3584)
            a("s_lshl_b32 s24, s39, 17")
            a("s_lshl_b32 s25, s38, 8")
            a("s_mov_b32 s26, s25")
        if ph == 2:
            make_srd(a, 16, 46, WS_ACT, 2048*3584)
    NEED2 = int(os.environ.get('NEED2', '14'))
    def sync(a, c):
        A = c['acc']
        MV = c['alloc'](24, 4)
        o = c['alloc'](4, 4)
        tm = c['alloc'](4, 4)
        a(f"v_lshlrev_b32 {v(o)}, 4, v1")
        a(f"v_and_b32 {v(o+1)}, 1, v1")
        a(f"v_lshlrev_b32 {v(o+1)}, 3, {v(o+1)}")
        a(f"v_and_b32 {v(tm)}, 62, v1")
        a(f"v_lshl_add_u32 {v(o+1)}, {v(tm)}, 4, {v(o+1)}")
        a(f"v_lshlrev_b32 {v(o+2)}, 1, {v(o+1)}")
        a(f"v_mov_b32 {v(o+3)}, 0")
        def loads(R, srow):
            a(f"buffer_load_dwordx2 {v(R,2)}, {v(o+1)}, s[56:59], {srow} offen")
            a(f"buffer_load_dwordx2 {v(R+2,2)}, {v(o+1)}, s[56:59], {srow} offen offset:16")
            for p in range(4):
                if p: a(f"s_add_u32 s71, {srow}, {p*2048*1024}")
                a(f"buffer_load_dwordx4 {v(R+4+4*p,4)}, {v(o)}, s[64:67], {'s71' if p else srow} offen")
        def compute(R, srow, W):
            X, S, U = W, W+8, W+16
            unpack8(a, R+4, S)
            for p in range(1, 4):
                unpack8(a, R+4+4*p, U)
                for i in range(8): a(f"v_add_f32 {v(S+i)}, {v(S+i)}, {v(U+i)}")
            unpack8(a, R, X)
            for i in range(8): a(f"v_fmac_f32 {v(X+i)}, {v(S+i)}, {v(MV+i)}")
            a(f"s_lshl_b32 s71, {srow}, 1")
            a(f"buffer_store_dwordx4 {v(X,4)}, {v(o+2)}, s[72:75], s71 offen")
            a(f"buffer_store_dwordx4 {v(X+4,4)}, {v(o+2)}, s[72:75], s71 offen offset:32")
            sm, tt, va = tm, tm+1, tm+2
            a(f"v_add_f32 {v(sm)}, {v(X)}, {v(X+1)}")
            for i in range(2, 8): a(f"v_add_f32 {v(sm)}, {v(sm)}, {v(X+i)}")
            wave_sum(a, sm, tt)
            a(f"v_mul_f32 {v(sm)}, 0x3b000000, {v(sm)}")
            for i in range(8): a(f"v_sub_f32 {v(S+i)}, {v(X+i)}, {v(sm)}")
            a(f"v_mul_f32 {v(va)}, {v(S)}, {v(S)}")
            for i in range(1, 8): a(f"v_fmac_f32 {v(va)}, {v(S+i)}, {v(S+i)}")
            wave_sum(a, va, tt)
            a(f"v_mov_b32 {v(tt)}, 0x3727c5ac")
            a(f"v_fmac_f32 {v(tt)}, 0x3b000000, {v(va)}")
            a(f"v_rsq_f32 {v(tt)}, {v(tt)}")
            a("s_nop 0")
            for i in range(8): a(f"v_mul_f32 {v(S+i)}, {v(S+i)}, {v(tt)}")
            for i in range(8): a(f"v_fma_f32 {v(S+i)}, {v(S+i)}, {v(MV+16+i)}, {v(MV+8+i)}")
            for i in range(4): a(f"v_cvt_pk_bf16_f32 {v(U+i)}, {v(S+2*i)}, {v(S+2*i+1)}")
            a(f"buffer_store_dwordx2 {v(U,2)}, {v(o+1)}, s[4:7], {srow} offen sc0 sc1")
            a(f"buffer_store_dwordx2 {v(U+2,2)}, {v(o+1)}, s[4:7], {srow} offen offset:16 sc0 sc1")
        a("s_lshl_b32 s68, s38, 3")
        a("s_add_u32 s68, s68, s28")
        a("s_lshl_b32 s68, s68, 10")
        a("s_add_u32 s68, s68, s24")
        a("s_lshl_b32 s69, s38, 1")
        a("s_add_u32 s69, s69, s28")
        a("s_add_u32 s69, s69, 112")
        a("s_lshl_b32 s69, s69, 10")
        a("s_add_u32 s69, s69, s24")
        a("s_lshr_b32 s70, s38, 3")
        a("s_lshr_b32 s71, s28, 1")
        a("s_or_b32 s70, s70, s71")
        loads(A, "s68")
        for j, col in enumerate((1024, 1536, 2048)):
            a(f"s_movk_i32 s71, {col*4}")
            a(f"buffer_load_dwordx4 {v(MV+8*j,4)}, {v(o+2)}, s[60:63], s71 offen")
            a(f"buffer_load_dwordx4 {v(MV+8*j+4,4)}, {v(o+2)}, s[60:63], s71 offen offset:32")
        nb1 = a.newlabel("nb"); nb2 = a.newlabel("nb")
        a("s_cmp_lg_u32 s70, 0")
        a(f"s_cbranch_scc1 {nb1}")
        loads(A+20, "s69")
        a.label(nb1)
        a("s_waitcnt vmcnt(0)")
        gstamp(a, "k_gu_kernel", 20)
        compute(A, "s68", A+40)
        a("s_cmp_lg_u32 s70, 0")
        a(f"s_cbranch_scc1 {nb2}")
        a("s_nop 4")
        compute(A+20, "s69", A+40)
        a.label(nb2)
        gstamp(a, "k_gu_kernel", 21)
        a("s_waitcnt vmcnt(0)")
        gstamp(a, "k_gu_kernel", 22)
        a("s_barrier")
        gstamp(a, "k_gu_kernel", 23)
        nw = a.newlabel("nw"); lp = a.newlabel("lp"); ok = a.newlabel("ok"); go = a.newlabel("go"); fl = a.newlabel("fl")
        a("s_cmp_lg_u32 s28, 0")
        a(f"s_cbranch_scc1 {nw}")
        a("s_lshl_b32 s70, s39, 2")
        a(f"v_mov_b32 {v(tm)}, 1")
        a("s_mov_b64 exec, 1")
        a(f"buffer_atomic_add {v(tm)}, {v(o+3)}, s[92:95], s70 offen sc0 sc1")
        a("s_mov_b64 exec, -1")
        a("s_movk_i32 s69, 0x2000")
        a("s_waitcnt vmcnt(0)")
        a(f"v_readfirstlane_b32 s71, {v(tm)}")
        a("s_nop 3")
        a("s_add_u32 s71, s71, 1")
        gstamp(a, "k_gu_kernel", 24)
        a.label(lp)
        a(f"s_cmp_ge_u32 s71, {NEED2}")
        a(f"s_cbranch_scc1 {ok}")
        a(f"buffer_load_dword {v(tm)}, {v(o+3)}, s[92:95], s70 offen sc0 sc1")
        a("s_waitcnt vmcnt(0)")
        a(f"v_readfirstlane_b32 s71, {v(tm)}")
        a("s_sub_u32 s69, s69, 1")
        a("s_cmp_lg_u32 s69, 0")
        a(f"s_cbranch_scc1 {lp}")
        a.label(ok)
        a(f"v_mov_b32 {v(tm)}, s69")
        a(f"v_mov_b32 {v(tm+1)}, {hex(147456)}")
        a(f"ds_write_b32 {v(tm+1)}, {v(tm)}")
        a("s_waitcnt lgkmcnt(0)")
        a.label(nw)
        a("s_barrier")
        a(f"v_mov_b32 {v(tm+1)}, {hex(147456)}")
        a(f"ds_read_b32 {v(tm)}, {v(tm+1)}")
        a("s_waitcnt lgkmcnt(0)")
        a(f"v_readfirstlane_b32 s69, {v(tm)}")
        a("s_nop 3")
        a("s_cmp_lg_u32 s69, 0")
        a(f"s_cbranch_scc1 {go}")
        a("s_lshl_b32 s68, s28, 14")
        a("s_add_u32 s68, s68, s24")
        a("s_mov_b32 s69, 16")
        a.label(fl)
        loads(A, "s68")
        a("s_waitcnt vmcnt(0)")
        compute(A, "s68", A+40)
        a("s_waitcnt vmcnt(0)")
        a("s_add_u32 s68, s68, 1024")
        a("s_sub_u32 s69, s69, 1")
        a("s_cmp_lg_u32 s69, 0")
        a(f"s_cbranch_scc1 {fl}")
        a("s_barrier")
        a.label(go)
    def epi(a, c):
        acc, TM, TN, T = c['acc'], c['TM'], c['TN'], c['T']
        vo = c['alloc'](); tmp = c['fr'][0]
        a(f"v_lshlrev_b32 {v(vo)}, 5, {v(T)}")
        a(f"v_lshl_add_u32 {v(vo)}, {v(T+1)}, 4, {v(vo)}")
        a(f"s_mul_i32 s34, s39, {128*3584}")
        a(f"s_mul_i32 s54, s30, {TM*32*3584}")
        a("s_add_u32 s34, s34, s54")
        a("s_lshl_b32 s54, s38, 13")
        a("s_add_u32 s34, s34, s54")
        a("s_lshl_b32 s54, s29, 11")
        a("s_add_u32 s34, s34, s54")
        for mb in range(TM):
            g = acc + mb*16
            u = acc + (TM+mb)*16
            for i in range(16):
                a(f"v_max_f32 {v(g+i)}, 0, {v(g+i)}")
                a(f"v_mul_f32 {v(g+i)}, {v(g+i)}, {v(u+i)}")
            a(f"s_add_u32 s54, s34, {mb*32*3584}")
            store_bf16_perm(a, g, tmp + 8*mb, vo, 16, "s54", 0, gs=1024)
    P = dict(NW=8, WM=2, WN=4, TM=2, TN=2, NST=3, KT=8, lda=1024, ldb=3584, nsub=2, perm=False, nwg=224,
             setup=setup, epilogue=epi)
    return gemm_A(a, "k_gu_kernel", P)

def gen_down(a):
    name = "k_down_kernel"
    NST, KT = 2, 7
    lda, ldb = 3584, 1024
    kernel_begin(a, name)
    end = a.newlabel("end")
    a("s_cmp_ge_u32 s2, 256")
    a(f"s_cbranch_scc1 {end}")
    load_ptr(a, 40, 'wd'); load_ptr(a, 42, 'out'); load_ptr(a, 46, 'ws')
    a("s_and_b32 s35, s2, 7")
    a("s_lshr_b32 s36, s2, 3")
    a("s_lshl_b32 s39, s35, 2")
    a("s_lshr_b32 s37, s36, 3")
    a("s_add_u32 s39, s39, s37")
    a("s_and_b32 s38, s36, 7")
    a("v_and_b32 v1, 63, v0")
    a("v_lshrrev_b32 v2, 6, v0")
    a("s_nop 0")
    a("v_readfirstlane_b32 s28, v2")
    T = 4
    vXd, vWd = 16, 17
    a("s_mov_b32 s29, 0")
    xdma_voff(a, 1, "s29", vXd, 10, lda, True)
    a(f"v_xor_b32 v18, 0x800, {v(vXd)}")
    wdma_voff(a, 1, "s29", vWd, 10, ldb, 64)
    a(f"s_mul_i32 s24, s39, {64*lda}")
    a("s_lshl_b32 s54, s28, 12")
    a("s_add_u32 s24, s24, s54")
    a("s_lshl_b32 s25, s28, 16")
    a("s_lshl_b32 s54, s38, 7")
    a("s_add_u32 s25, s25, s54")
    a("s_lshl_b32 s33, s28, 15")
    a("s_waitcnt lgkmcnt(0)")
    make_srd(a, 4, 46, WS_ACT, 2048*3584)
    make_srd(a, 8, 40, 0, 1792*1024)
    xa = 20
    wa = [24, 25]
    def late():
        make_srd(a, 16, 42, 0, 2048*1024)
        make_srd(a, 12, 46, WS_X1, 2048*2048)
        make_srd(a, 20, 46, WS_MOD, 12288)
        lane_decomp(a, 1, T)
        xfrag_addrs(a, T, xa, 128, 0, "s33")
        for nb in range(2):
            wfrag_addr(a, T, wa[nb], 10, 128, True, nb, 8192)
            a(f"v_add_u32 {v(wa[nb])}, s33, {v(wa[nb])}")
    fr = [28, 44]
    acc = 60
    def dma(t):
        st = t % NST
        out = []
        for j in range(8):
            out.append([f"s_add_u32 m0, s33, {st*16384 + j*1024}",
                        f"s_add_u32 s34, s24, {t*16384 + (j>>2)*32*lda + (j&3)*256}",
                        f"buffer_load_dwordx4 {v(vXd if j%2==0 else 18)}, s[4:7], s34 offen lds"])
        for j in range(8):
            out.append([f"s_add_u32 m0, s33, {st*16384 + 8192 + j*1024}",
                        f"s_add_u32 s34, s25, {t*256*ldb + j*8*ldb}",
                        f"buffer_load_dwordx4 {v(vWd)}, s[8:11], s34 offen lds"])
        return out
    def reads(t, ks, f):
        st = t % NST
        for mb in range(2):
            a(f"ds_read_b128 {v(f+4*mb,4)}, {v(xa+ks)} offset:{st*16384+mb*4096}")
        for nb in range(2):
            for half in range(2):
                a(f"ds_read_b64_tr_b16 {v(f+8+4*nb+2*half,2)}, {v(wa[nb])} offset:{st*16384+16*ks*128+half*8*128}")
    for t in range(2):
        for g in dma(t):
            for i in g: a(i)
    late()
    for t in range(KT):
        a(f"s_waitcnt vmcnt({16 if t < KT-1 else 0})")
        reads(t, 0, fr[0])
        for ks in range(4):
            a("s_waitcnt lgkmcnt(0)")
            if ks < 3: reads(t, ks+1, fr[(ks+1)&1])
            f = fr[ks&1]
            for nb in range(2):
                for mb in range(2):
                    c = acc + (nb*2+mb)*16
                    src = "0" if (t == 0 and ks == 0) else v(c,16)
                    a(f"{MF} {v(c,16)}, {v(f+8+4*nb,4)}, {v(f+4*mb,4)}, {src}")
        if t+2 < KT:
            for g in dma(t+2):
                for i in g: a(i)
    a("s_nop 15")
    a("s_barrier")
    a("v_lshlrev_b32 v26, 4, v1")
    a("s_lshl_b32 s54, s28, 14")
    a("v_add_u32 v27, s54, v26")
    for tl in range(4):
        for q in range(4):
            a(f"ds_write_b128 v27, {v(acc+tl*16+4*q,4)} offset:{tl*4096+q*1024}")
    a("s_waitcnt lgkmcnt(0)")
    a("s_barrier")
    a("s_lshl_b32 s54, s28, 12")
    a("v_add_u32 v27, s54, v26")
    a("s_lshr_b32 s29, s28, 1")
    a("s_and_b32 s30, s28, 1")
    a("s_lshl_b32 s54, s39, 6")
    a("s_lshl_b32 s55, s30, 5")
    a("s_add_u32 s54, s54, s55")
    a("s_lshl_b32 s55, s38, 6")
    a("s_lshl_b32 s56, s29, 5")
    a("s_add_u32 s55, s55, s56")
    a("s_lshl_b32 s56, s54, 11")
    a("s_lshl_b32 s57, s55, 2")
    a("s_add_u32 s56, s56, s57")
    a("s_add_u32 s57, s57, 10240")
    a("s_lshr_b32 s58, s56, 1")
    a(f"v_lshlrev_b32 v10, 11, {v(T)}")
    a(f"v_lshl_add_u32 v10, {v(T+1)}, 4, v10")
    a(f"v_lshlrev_b32 v11, 4, {v(T+1)}")
    a("v_lshrrev_b32 v12, 1, v10")
    for q in range(4):
        a(f"buffer_load_dwordx4 {v(28+4*q,4)}, v10, s[12:15], s56 offen offset:{q*32}")
        a(f"buffer_load_dwordx4 {v(44+4*q,4)}, v11, s[20:23], s57 offen offset:{q*32}")
    for w in range(4):
        for q in range(4):
            a(f"ds_read_b128 {v(acc+w*16+4*q,4)}, v27 offset:{w*16384+q*1024}")
        if w == 2: a("s_waitcnt lgkmcnt(0)")
    a("s_waitcnt lgkmcnt(0)")
    for w in range(1, 4):
        for i in range(16):
            a(f"v_add_f32 {v(acc+i)}, {v(acc+i)}, {v(acc+16*w+i)}")
    a("s_waitcnt vmcnt(0)")
    for i in range(16):
        a(f"v_fmac_f32 {v(28+i)}, {v(acc+i)}, {v(44+i)}")
    for q in range(4):
        a(f"v_cvt_pk_bf16_f32 {v(acc+16+2*q)}, {v(28+4*q)}, {v(28+4*q+1)}")
        a(f"v_cvt_pk_bf16_f32 {v(acc+16+2*q+1)}, {v(28+4*q+2)}, {v(28+4*q+3)}")
        a(f"buffer_store_dwordx2 {v(acc+16+2*q,2)}, v12, s[16:19], s58 offen offset:{q*16}")
    a.label(end)
    a("s_endpgm")
    return name, acc+64, (256, 256, 131072)
```
